```python
import torch

def _softmax(x, axis=-1):
    return torch.softmax(x, dim=axis)
def _gelu(x):
    return torch.nn.functional.gelu(x, approximate="tanh")
def _silu(x):
    return torch.nn.functional.silu(x)
def _sigmoid(x):
    return torch.sigmoid(x)
def _layernorm(x, axis=-1, eps=1e-5):
    m = x.mean(dim=axis, keepdim=True)
    v = x.var(dim=axis, keepdim=True, unbiased=False)
    return (x - m) / torch.sqrt(v + eps)
def _scatter_add(tgt, idx, src, axis=0):
    return tgt.clone().index_add_(axis, idx, src)
def _segment_sum(src, seg, n):
    out = torch.zeros((n,) + src.shape[1:], dtype=src.dtype)
    return out.index_add_(0, seg, src)
def _pad(x, pw):
    flat = tuple(v for pair in reversed(pw) for v in pair)
    return torch.nn.functional.pad(x, flat)

kernel_name = 'recurrent_scan__mha_block__glu_gated_glu__prompt'

def setup_inputs():

    _w = (lambda a: (lambda t: t.to(torch.bfloat16) if t.is_floating_point() else t)(torch.as_tensor(a)))
    def _A_setup():
        B, S, D, H = 1, 2048, 448, 16
        return {
            "x": _w((lambda *s: torch.randn(*s, dtype=torch.bfloat16) * 0.05)(B, S, D)),
            "wqkv": _w((lambda *s: torch.randn(*s, dtype=torch.bfloat16) * 0.05)(D, 3 * D)),
            "wo": _w((lambda *s: torch.randn(*s, dtype=torch.bfloat16) * 0.05)(D, D)),
        }
    _A_in = _A_setup()

    def _B_setup():
        B, S, D, F = 1, 2048, 448, 1792
        return {
            "x": _w((lambda *s: torch.randn(*s, dtype=torch.bfloat16) * 0.05)(B, S, D)),
            "w_gate": _w((lambda *s: torch.randn(*s, dtype=torch.bfloat16) * 0.05)(D, F)),
            "w_up": _w((lambda *s: torch.randn(*s, dtype=torch.bfloat16) * 0.05)(D, F)),
            "w_down": _w((lambda *s: torch.randn(*s, dtype=torch.bfloat16) * 0.05)(F, D)),
        }
    _B_in = _B_setup()

    return {
        "A_x": _A_in["x"],
        "A_wqkv": _A_in["wqkv"],
        "A_wo": _A_in["wo"],
        "B_x": _B_in["x"],
        "B_w_gate": _B_in["w_gate"],
        "B_w_up": _B_in["w_up"],
        "B_w_down": _B_in["w_down"],
    }

def reference(A_x, A_wqkv, A_wo, B_x, B_w_gate, B_w_up, B_w_down):
    def _A_ref(x, wqkv, wo):
        B, S, D = x.shape
        H = 16
        Dh = D // H
        qkv = (lambda x, *d: x.permute(*d))((x @ wqkv).reshape(B, S, 3, H, Dh), 2, 0, 3, 1, 4)
        q, k, v = qkv[0], qkv[1], qkv[2]
        scores = torch.einsum("bhqd,bhkd->bhqk", q, k) * (Dh ** -0.5)
        p = _softmax(scores, axis=-1)
        o = torch.einsum("bhqk,bhkd->bhqd", p, v)
        return (lambda x, *d: x.permute(*d))(o, 0, 2, 1, 3).reshape(B, S, D) @ wo

    def _B_ref(x, w_gate, w_up, w_down):
        g = torch.einsum("bsd,df->bsf", x, w_gate)
        u = torch.einsum("bsd,df->bsf", x, w_up)
        h = _sigmoid(g) * u
        return torch.einsum("bsf,fd->bsd", h, w_down)

    x = A_x
    xn = _layernorm(x, axis=-1)
    s = _A_ref(xn, A_wqkv, A_wo)
    g = _silu(_B_ref(xn, B_w_gate, B_w_up, B_w_down))
    return x + s * g
```

```python
import os
from kasm import *
from layout import *

SLOT = 28928
NSLOT = 5
XO, GO, UO, QO = 0, 8192, 15488, 22656
CONST = NSLOT * SLOT
EX = CONST + 4352
EX_ST = EX
EX_CS = EX_ST + 4096
EX_CT = EX_CS + 2560
EX_TK = EX_CT + 1280
K1_LDS = EX_TK + 1024

S_X, S_WQ, S_G, S_U, S_WS, S_SJ = 24, 28, 32, 36, 40, 44
S_RB, S_J, S_W = 48, 49, 50
S_SLW, S_SLR, S_XO, S_GO, S_QO, S_CNT = 51, 52, 53, 54, 55, 56
S_HI = 58
S_B4 = 60
S_SP = 62
S_T = 64
S_SJO = 76
S_TT = 77

V_L = 1
ACC = 16
F = [96, 120]
CS = 144
SEL = 156
SJ = 160
V_DV = 168
V_XB0, V_XB1, V_GUB, V_QB, V_CB = 172, 173, 174, 175, 176
V_X0, V_X1, V_GU, V_KV, V_Q = 177, 178, 179, 180, 181
V_SQ = 182
V_T = 184
K1_VGPR = 256

STP = os.environ.get('K1ST', 'bar0,loop,ebar,epi,end').split(',')
def st(k, name):
    if name in STP: stamp(k, 2 + STP.index(name))

def dma_list(w):
    l = [('X', w)]
    l.append(('G', w) if w < 7 else ('Q', 0))
    l.append(('U', w) if w < 7 else ('Q', 1))
    if w >= 4: l.append(('Q', w - 2))
    return l

def combos(w):
    tt, g = w & 3, w >> 2
    t = [[0, 1, 2], [3, 4, 5], [6, 7], [8, 9]] if g == 0 else [[0, 1], [2, 3], [4, 5, 6], [7, 8, 9]]
    return t[tt]

def gen_k1():
    k = K()
    k(f'''
    s_cmp_ge_u32 s2, 256
    s_cbranch_scc1 k1_end
    s_load_dwordx16 s[4:19], s[0:1], 0
    s_load_dwordx4 s[20:23], s[0:1], 64
    v_lshrrev_b32 v2, 6, v0
    v_and_b32 v{V_L}, 63, v0
    v_readfirstlane_b32 s{S_W}, v2
    s_and_b32 s{S_T}, s2, 7
    s_lshr_b32 s{S_T+1}, s2, 3
    s_and_b32 s{S_RB}, s{S_T}, 1
    s_lshl_b32 s{S_RB}, s{S_RB}, 3
    s_and_b32 s{S_T+2}, s{S_T+1}, 7
    s_add_u32 s{S_RB}, s{S_RB}, s{S_T+2}
    s_lshr_b32 s{S_J}, s{S_T}, 1
    s_lshl_b32 s{S_J}, s{S_J}, 2
    s_lshr_b32 s{S_T+2}, s{S_T+1}, 3
    s_add_u32 s{S_J}, s{S_J}, s{S_T+2}
    s_and_b32 s{S_TT}, s{S_W}, 3
    s_mov_b32 s{S_HI}, 0
    s_mov_b32 s{S_HI+1}, -1
    s_mov_b32 s{S_B4}, 0xffff0000
    s_mov_b32 s{S_B4+1}, 0xffff0000
    s_mov_b32 s{S_SP}, 0x88880000
    s_mov_b32 s{S_SP+1}, 0x88880000
    ''')
    T = V_T
    stamp(k, 0, True); stamp(k, 1)
    k(f'''
    s_lshl_b32 s{S_T}, s2, 3
    s_add_u32 s{S_T}, s{S_T}, s{S_W}            ; gw
    v_and_b32 v{T}, 31, v{V_L}                  ; n
    v_lshrrev_b32 v{T+1}, 5, v{V_L}             ; hi
    s_cmp_lt_u32 s{S_T}, 1568
    s_cbranch_scc0 k1_sj_wo
    ; W_down fragment: nt = gw/112, slab = gw%112
    s_mul_i32 s{S_T+1}, s{S_T}, 9363
    s_lshr_b32 s{S_T+1}, s{S_T+1}, 20           ; nt
    s_mul_i32 s{S_T+2}, s{S_T+1}, 112
    s_sub_u32 s{S_T+2}, s{S_T}, s{S_T+2}        ; slab
    s_lshl_b32 s{S_SJO}, s{S_T}, 10
    s_add_u32 s{S_SJO}, s{S_SJO}, {WS_WD}
    s_lshl_b32 s{S_T+3}, s{S_T+2}, 4
    s_mov_b32 s{S_T+4}, 64
    s_waitcnt lgkmcnt(0)
    s_mov_b32 s{S_SJ}, s16
    s_mov_b32 s{S_SJ+1}, s17
    s_mov_b32 s{S_SJ+2}, {1792*448*2}
    s_mov_b32 s{S_SJ+3}, 0x20000
    s_branch k1_sj_go
k1_sj_wo:
    s_sub_u32 s{S_T}, s{S_T}, 1568
    s_lshr_b32 s{S_T+1}, s{S_T}, 5
    s_bfe_u32 s{S_T+2}, s{S_T}, 0x40001         ; head
    s_and_b32 s{S_T+5}, s{S_T}, 1               ; slab
    s_mul_i32 s{S_T+3}, s{S_T+2}, 28
    s_lshl_b32 s{S_T+6}, s{S_T+5}, 4
    s_add_u32 s{S_T+3}, s{S_T+3}, s{S_T+6}
    s_sub_u32 s{S_T+4}, 28, s{S_T+6}
    s_lshl_b32 s{S_SJO}, s{S_T}, 10
    s_add_u32 s{S_SJO}, s{S_SJO}, {WS_WO}
    s_cmp_lt_u32 s{S_T}, 448
    s_cselect_b32 s{S_SJO}, s{S_SJO}, {WS_DUMMY}
    s_cselect_b32 s{S_T+4}, s{S_T+4}, 0
    s_waitcnt lgkmcnt(0)
    s_mov_b32 s{S_SJ}, s8
    s_mov_b32 s{S_SJ+1}, s9
    s_mov_b32 s{S_SJ+2}, {448*448*2}
    s_mov_b32 s{S_SJ+3}, 0x20000
k1_sj_go:
    s_mul_i32 s{S_T+3}, s{S_T+3}, 896
    s_lshl_b32 s{S_T+1}, s{S_T+1}, 6
    s_add_u32 s{S_T+3}, s{S_T+3}, s{S_T+1}
    v_lshlrev_b32 v{T}, 1, v{T}                 ; n*2
    v_lshlrev_b32 v{T+1}, 2, v{T+1}             ; 4*hi
    v_mov_b32 v{T+4}, 0x40000000
    ''')
    for j in range(8):
        rr = j if j < 4 else 8 + j - 4
        k(f'''
        v_add_u32 v{T+2}, {rr}, v{T+1}
        v_cmp_gt_u32 vcc, s{S_T+4}, v{T+2}
        v_mul_u32_u24 v250, 896, v{T+2}
        v_add_u32 v{T+3}, v250, v{T}
        v_cndmask_b32 v{T+3}, v{T+4}, v{T+3}, vcc
        buffer_load_ushort v{SJ+j}, v{T+3}, s[{S_SJ}:{S_SJ+3}], s{S_T+3} offen
        ''')
    k(f'''
    s_mov_b32 s{S_X}, s4
    s_mov_b32 s{S_X+1}, s5
    s_mov_b32 s{S_X+2}, {2048*448*2}
    s_mov_b32 s{S_X+3}, 0x20000
    s_mov_b32 s{S_WQ}, s6
    s_mov_b32 s{S_WQ+1}, s7
    s_mov_b32 s{S_WQ+2}, {448*1344*2}
    s_mov_b32 s{S_WQ+3}, 0x20000
    s_mov_b32 s{S_G}, s12
    s_mov_b32 s{S_G+1}, s13
    s_mov_b32 s{S_G+2}, {448*1792*2}
    s_mov_b32 s{S_G+3}, 0x20000
    s_mov_b32 s{S_U}, s14
    s_mov_b32 s{S_U+1}, s15
    s_mov_b32 s{S_U+2}, {448*1792*2}
    s_mov_b32 s{S_U+3}, 0x20000
    s_mov_b32 s{S_WS}, s22
    s_mov_b32 s{S_WS+1}, s23
    s_mov_b32 s{S_WS+2}, {WS_SIZE}
    s_mov_b32 s{S_WS+3}, 0x20000
    ''')
    st(k, 'sj')
    for w in range(1, 8):
        k(f'''
        s_cmp_eq_u32 s{S_W}, {w}
        s_cbranch_scc1 k1_w{w}
        ''')
    for w in range(8):
        gen_wave(k, w)
    gen_epi(k, 0)
    gen_epi(k, 1)
    k('''
k1_end:
    s_endpgm
    ''')
    return k

def dma_voff(k, kind, i, dst):
    T = V_T
    if kind == 'X':
        k(f'''
        v_add_u32 v{T}, {64*i}, v{V_L}
        v_lshrrev_b32 v{T+1}, 2, v{T}               ; tok
        v_bfe_u32 v{T+2}, v{T}, 4, 2                ; (tok>>2)&3
        v_and_b32 v{T+3}, 3, v{T}
        v_xor_b32 v{T+2}, v{T+2}, v{T+3}            ; chunk
        v_lshlrev_b32 v{T+2}, 4, v{T+2}
        v_mul_u32_u24 v250, 896, v{T+1}
        v_add_u32 v{T+2}, v250, v{T+2}
        s_mul_i32 s{S_T}, s{S_RB}, {128*896}
        v_add_u32 v{dst}, s{S_T}, v{T+2}
        ''')
    elif kind in 'GU':
        k(f'''
        v_add_u32 v{T}, {64*i}, v{V_L}
        v_mul_u32_u24 v{T+1}, 4682, v{T}
        v_lshrrev_b32 v{T+1}, 16, v{T+1}            ; row = p/14
        v_mul_u32_u24 v{T+2}, 14, v{T+1}
        v_sub_u32 v{T+2}, v{T}, v{T+2}              ; c
        v_lshlrev_b32 v{T+2}, 4, v{T+2}
        v_mul_u32_u24 v250, 3584, v{T+1}
        v_add_u32 v{T+2}, v250, v{T+2}
        s_mul_i32 s{S_T}, s{S_J}, 224
        v_add_u32 v{dst}, s{S_T}, v{T+2}
        ''')
    else:
        k(f'''
        v_add_u32 v{T}, {64*i}, v{V_L}
        v_mul_u32_u24 v{T+1}, 5462, v{T}
        v_lshrrev_b32 v{T+1}, 16, v{T+1}            ; row = p/12
        v_mul_u32_u24 v{T+2}, 12, v{T+1}
        v_sub_u32 v{T+2}, v{T}, v{T+2}              ; c12
        v_lshrrev_b32 v{T+3}, 2, v{T+2}             ; seg
        v_and_b32 v{T+2}, 3, v{T+2}
        v_lshlrev_b32 v{T+2}, 4, v{T+2}
        v_mul_u32_u24 v250, 896, v{T+3}
        v_add_u32 v{T+2}, v250, v{T+2}
        v_mul_u32_u24 v250, 2688, v{T+1}
        v_add_u32 v{T+2}, v250, v{T+2}
        s_mul_i32 s{S_T}, s{S_J}, 56
        v_add_u32 v{dst}, s{S_T}, v{T+2}
        ''')

def dma_issue(w):
    out = []
    for n, (kind, i) in enumerate(dma_list(w)):
        reg = {'X': XO, 'G': GO, 'U': UO, 'Q': QO}[kind]
        srd = {'X': S_X, 'G': S_G, 'U': S_U, 'Q': S_WQ}[kind]
        so = {'X': S_XO, 'G': S_GO, 'U': S_GO, 'Q': S_QO}[kind]
        out.append(f's_add_u32 m0, s{S_SLW}, {reg + 1024*i}\ns_nop 0\n'
                   f'buffer_load_dwordx4 v{V_DV+n}, s[{srd}:{srd+3}], s{so} offen lds')
    return out

def dma_advance():
    return [f's_add_u32 s{S_XO}, s{S_XO}, 64',
            f's_cmp_eq_u32 s{S_XO}, {14*64}',
            f's_cselect_b32 s{S_XO}, 0x40000000, s{S_XO}',
            f's_add_u32 s{S_GO}, s{S_GO}, {32*3584}',
            f's_add_u32 s{S_QO}, s{S_QO}, {32*2688}',
            f's_add_u32 s{S_SLW}, s{S_SLW}, {SLOT}',
            f's_cmp_eq_u32 s{S_SLW}, {NSLOT*SLOT}',
            f's_cselect_b32 s{S_SLW}, 0, s{S_SLW}']

def frag_reads(g, fs, ks):
    b = F[fs]
    out = [f'ds_read_b128 v[{b}:{b+3}], v{V_X0 if ks == 0 else V_X1}']
    for t in range(5):
        r = b + 4 + 4 * t
        for i in range(2):
            if g == 0 and t < 3:
                a = V_Q if t == 0 else V_KV
                off = ks * 16 * 192 + i * 4 * 192 + t * 64
            else:
                gt = t - 3 if g == 0 else t + 2
                a = V_GU
                off = ks * 16 * 224 + i * 4 * 224 + gt * 32
            out.append(f'ds_read_b64_tr_b16 v[{r+2*i}:{r+2*i+1}], v{a} offset:{off}')
    return out

def addr_update(g):
    out = [f'v_add_u32 v{V_X0}, s{S_SLR}, v{V_XB0}',
           f'v_add_u32 v{V_GU}, s{S_SLR}, v{V_GUB}']
    if g == 0:
        out += [f'v_add_u32 v{V_KV}, s{S_SLR}, v{V_QB}',
                f'v_cndmask_b32 v{V_Q}, v{V_KV}, v{V_CB}, s[{S_SP}:{S_SP+1}]']
    out += [f'v_add_u32 v{V_X1}, s{S_SLR}, v{V_XB1}']
    return out

def slr_advance():
    return [f's_add_u32 s{S_SLR}, s{S_SLR}, {SLOT}',
            f's_cmp_eq_u32 s{S_SLR}, {NSLOT*SLOT}',
            f's_cselect_b32 s{S_SLR}, 0, s{S_SLR}']

def sq_ops(fs):
    b = F[fs]; T = V_T
    out = []
    for i in range(4):
        out += [f'v_lshlrev_b32 v{T+2*i}, 16, v{b+i}',
                f'v_and_b32 v{T+2*i+1}, 0xffff0000, v{b+i}']
    for i in range(4):
        out += [f'v_fmac_f32 v{V_SQ}, v{T+2*i}, v{T+2*i}',
                f'v_fmac_f32 v{V_SQ+1}, v{T+2*i+1}, v{T+2*i+1}']
    return out

def phase(k, w, fs, ks, reads, extra):
    g = w >> 2
    b = F[fs]
    cmb = [(c // 5, c % 5, n) for n, c in enumerate(combos(w))]
    issued = 0
    rd_per = [3, 2, 2, 2, 2]
    ex_per = [(len(extra) * (t + 1)) // 5 - (len(extra) * t) // 5 for t in range(5)]
    ri = 0; ei = 0
    for t in range(5):
        need_done = 1 + 2 * (t + 1)
        allowed = (11 - need_done) + issued
        k(f's_waitcnt lgkmcnt({min(allowed, 15)})')
        a = ACC + 16 * t
        wf = f'v[{b+4+4*t}:{b+7+4*t}]'; xf = f'v[{b}:{b+3}]'
        if g == 0 and t == 2:
            k(f'v_mfma_f32_32x32x16_bf16 v[{a}:{a+15}], {xf}, {wf}, v[{a}:{a+15}]')
        else:
            k(f'v_mfma_f32_32x32x16_bf16 v[{a}:{a+15}], {wf}, {xf}, v[{a}:{a+15}]')
        for _ in range(rd_per[t]):
            k(reads[ri]); ri += 1; issued += 1
        for _ in range(ex_per[t]):
            k(extra[ei]); ei += 1
        for (cks, ct, n) in cmb:
            if cks == ks and ct == t and not os.environ.get('NOCS'):
                c = CS + 4 * n
                k(f'v_mfma_f32_16x16x32_bf16 v[{c}:{c+3}], v[{SEL}:{SEL+3}], {wf}, v[{c}:{c+3}]')

def gen_wave(k, w):
    g = w >> 2; tt = w & 3
    T = V_T
    nd = len(dma_list(w))
    k(f'k1_w{w}:')
    for n, (kind, i) in enumerate(dma_list(w)):
        dma_voff(k, kind, i, V_DV + n)
    k(f'''
    s_mov_b32 s{S_SLW}, 0
    s_mov_b32 s{S_XO}, 0
    s_mov_b32 s{S_GO}, 0
    s_mov_b32 s{S_QO}, 0
    ''')
    for _st in range(4):
        for x in dma_issue(w): k(x)
        for x in dma_advance(): k(x)
    st(k, 'dma')
    k(f'''
    v_and_b32 v{T}, 31, v{V_L}                    ; t
    v_lshrrev_b32 v{T+1}, 5, v{V_L}               ; hi
    v_bfe_u32 v{T+2}, v{V_L}, 2, 2                ; (t>>2)&3 = r
    v_xor_b32 v{T+3}, v{T+1}, v{T+2}
    v_lshlrev_b32 v{T+3}, 4, v{T+3}
    v_lshl_add_u32 v{T+3}, v{T}, 6, v{T+3}
    v_add_u32 v{V_XB0}, {XO + tt*32*64}, v{T+3}
    v_xor_b32 v{V_XB1}, 32, v{V_XB0}
    v_lshl_add_u32 v{T+4}, v{T+1}, 3, v{T+2}      ; 8hi + r
    v_and_b32 v{T+5}, 3, v{V_L}                   ; c
    v_lshlrev_b32 v{T+5}, 3, v{T+5}               ; c*8
    v_bfe_u32 v{T+6}, v{V_L}, 4, 1                ; colhalf
    v_mul_u32_u24 v250, 224, v{T+4}
    v_add_u32 v{T+7}, v250, v{T+5}
    v_mul_u32_u24 v250, {UO-GO}, v{T+6}
    v_add_u32 v{T+7}, v250, v{T+7}
    v_add_u32 v{V_GUB}, {GO}, v{T+7}
    v_mul_u32_u24 v250, 192, v{T+4}
    v_add_u32 v{T+7}, v250, v{T+5}
    v_lshl_add_u32 v{T+7}, v{T+6}, 5, v{T+7}
    v_add_u32 v{V_QB}, {QO}, v{T+7}
    v_and_b32 v{T+7}, 255, v{V_QB}
    v_add_u32 v{V_CB}, {CONST}, v{T+7}
    v_and_b32 v{T+7}, 1, v{V_L}
    v_cmp_eq_u32 vcc, v{T+7}, v{T+6}
    v_mov_b32 v{T+8}, 0x3f803f80
    v_cndmask_b32 v{SEL}, 0, v{T+8}, vcc
    v_cndmask_b32 v{SEL+1}, 0, v{T+8}, vcc
    v_cndmask_b32 v{SEL+2}, 0, v{T+8}, vcc
    v_cndmask_b32 v{SEL+3}, 0, v{T+8}, vcc
    v_mov_b32 v{T+9}, v{T+8}
    v_lshlrev_b32 v{T+10}, 3, v0
    ds_write_b64 v{T+10}, v[{T+8}:{T+9}] offset:{CONST - 131072 + 0} 
    ''')
    return_fix = True
    k.lines.pop()
    k(f'''
    v_add_u32 v{T+10}, {CONST}, v{T+10}
    ds_write_b64 v{T+10}, v[{T+8}:{T+9}]
    ds_write_b64 v{T+10}, v[{T+8}:{T+9}] offset:256
    ''')
    for r in range(ACC, ACC + 80): k(f'v_mov_b32 v{r}, 0')
    for r in range(CS, CS + 12): k(f'v_mov_b32 v{r}, 0')
    k(f'''
    v_mov_b32 v{V_SQ}, 0
    v_mov_b32 v{V_SQ+1}, 0
    s_mov_b32 s{S_SLR}, 0
    s_mov_b32 s{S_CNT}, 14
    ''')
    for x in addr_update(g): k(x)
    st(k, 'setup')
    k(f'''
    s_waitcnt vmcnt({3*nd}) lgkmcnt(0)
    s_barrier
    ''')
    st(k, 'bar0')
    for x in frag_reads(g, 0, 0): k(x)
    for i in range(4):
        k(f'v_lshl_or_b32 v{SJ+i}, v{SJ+2*i+1}, 16, v{SJ+2*i}')
    k(f'k1_loop{w}:')
    phase(k, w, 0, 0, frag_reads(g, 1, 1), (sq_ops(0) if g == 0 else []) + slr_advance())
    k(f'''
    s_waitcnt vmcnt({2*nd})
    s_barrier
    ''')
    for x in addr_update(g)[:-1]: k(x)
    ex = [addr_update(g)[-1]] + ([] if os.environ.get('NODMA') else dma_issue(w)) + (sq_ops(1) if g == 1 else []) + dma_advance() + [f's_sub_u32 s{S_CNT}, s{S_CNT}, 1']
    phase(k, w, 1, 1, frag_reads(g, 0, 0), ex)
    k(f'''
    s_cmp_lg_u32 s{S_CNT}, 0
    s_cbranch_scc1 k1_loop{w}
    ''')
    st(k, 'loop')
    k(f'''
    v_and_b32 v{T}, 31, v{V_L}
    v_lshrrev_b32 v{T+1}, 5, v{V_L}
    v_lshlrev_b32 v{T+2}, 5, v{T}
    v_lshl_add_u32 v{T+2}, v{T+1}, 2, v{T+2}
    v_add_u32 v{T+2}, {EX_ST + tt*32*32}, v{T+2}       ; st[tok][hi]
    v_add_f32 v{V_SQ}, v{V_SQ}, v{V_SQ+1}
    v_lshlrev_b32 v{T+3}, 3, v{T}
    v_add_u32 v{T+3}, {EX_CS}, v{T+3}
    s_waitcnt lgkmcnt(0)
    ds_write_b32 v{T+2}, v{V_SQ} offset:{8*g}
    ''')
    if g == 0:
        k(f'ds_write_b32 v{T+2}, v{ACC+12} offset:16')
    for n, c in enumerate(combos(w)):
        cks, ct = c // 5, c % 5
        k(f'''
        v_cndmask_b32 v{T+4+n}, v{CS+4*n}, v{CS+4*n+1}, s[{S_B4}:{S_B4+1}]
        ds_write_b32 v{T+3}, v{T+4+n} offset:{(g*5+ct)*256 + 4*cks}
        ''')
    k(f's_branch k1_epi{g}')

def pk(op, d, a, b, c=None, bc=()):
    n = 2 if c is None else 3
    sel_hi = ','.join('0' if i in bc else '1' for i in range(n))
    ops = f'v[{d}:{d+1}], v[{a}:{a+1}], v[{b}:{b+1}]' + (f', v[{c}:{c+1}]' if c is not None else '')
    return f'{op} {ops} op_sel_hi:[{sel_hi}]'

def gen_epi(k, g):
    T = V_T
    C0 = F[0]
    k(f'k1_epi{g}:')
    NMU, RS, A1, SD, QS = T + 0, T + 2, T + 4, T + 6, T + 8
    U = T + 10
    k(f'''
    v_and_b32 v{U}, 31, v{V_L}                         ; t / n
    v_lshrrev_b32 v{U+1}, 5, v{V_L}                    ; hi
    s_lshl_b32 s{S_T}, s{S_TT}, 10
    v_lshlrev_b32 v{U+2}, 5, v{U}
    v_add_u32 v{U+2}, s{S_T}, v{U+2}
    v_add_u32 v{U+2}, {EX_ST}, v{U+2}                  ; &st[tok]
    v_lshlrev_b32 v{U+3}, 3, v{U}
    v_add_u32 v{U+3}, {EX_CS + g*5*256}, v{U+3}        ; &cs[tile0][n]
    v_lshlrev_b32 v{U+4}, 2, v{U}
    v_add_u32 v{U+4}, {EX_CT + g*5*128}, v{U+4}        ; &ct[tile0][n]
    v_lshlrev_b32 v{U+5}, 4, v{U+1}
    v_add_u32 v{U+5}, {EX_CT + g*5*128}, v{U+5}        ; &ct[tile0][4hi]
    v_lshlrev_b32 v2, 4, v{V_L}
    s_waitcnt vmcnt(0) lgkmcnt(0)
    s_barrier
    ''')
    st(k, 'ebar')
    k(f'''
    ds_read_b128 v[{U+6}:{U+9}], v{U+2}
    ds_read_b32 v{U+10}, v{U+2} offset:20
    ''')
    for t in range(5):
        k(f'ds_read_b64 v[{U+12+2*t}:{U+13+2*t}], v{U+3} offset:{t*256}')
    k(f'''
    buffer_store_dwordx4 v[{SJ}:{SJ+3}], v2, s[{S_WS}:{S_WS+3}], s{S_SJO} offen
    s_waitcnt lgkmcnt(0)
    ''')
    for t in range(5):
        k(f'''
        v_add_f32 v{U+12+2*t}, v{U+12+2*t}, v{U+13+2*t}
        ds_write_b32 v{U+4}, v{U+12+2*t} offset:{t*128}
        ''')
    k(f'''
    v_add_f32 v{U+6}, v{U+6}, v{U+7}
    v_add_f32 v{U+8}, v{U+8}, v{U+9}
    v_add_f32 v{U+6}, v{U+6}, v{U+8}                   ; sum x^2
    v_mul_f32 v{NMU}, {flt(-1.0/448)}, v{U+10}         ; -mu
    v_mul_f32 v{U+6}, {flt(1.0/448)}, v{U+6}
    v_fma_f32 v{U+6}, -v{NMU}, v{NMU}, v{U+6}          ; var
    v_max_f32 v{U+6}, 0, v{U+6}
    v_add_f32 v{U+6}, {flt(1e-5)}, v{U+6}
    v_rsq_f32 v{RS}, v{U+6}
    v_sqrt_f32 v{SD}, v{U+6}
    v_mul_f32 v{A1}, {flt(-LOG2E)}, v{RS}
    v_mul_f32 v{QS}, {flt(LOG2E * 28 ** -0.5)}, v{RS}
    ''')
    if g == 0:
        k(f'''
        v_lshlrev_b32 v{U+7}, 2, v{U}
        s_lshl_b32 s{S_T}, s{S_TT}, 7
        v_add_u32 v{U+7}, s{S_T}, v{U+7}
        v_add_u32 v{U+7}, {EX_TK}, v{U+7}
        ds_write_b32 v{U+7}, v{NMU}
        ds_write_b32 v{U+7}, v{RS} offset:512
        v_lshlrev_b32 v{U+8}, 4, v{U+1}
        v_add_u32 v{U+8}, s{S_T}, v{U+8}
        v_add_u32 v{U+8}, {EX_TK}, v{U+8}
        ''')
    k('s_waitcnt lgkmcnt(0)')
    CR = [96, 112, 128, 144, 220]
    if g == 0:
        CR = [96, 112, None, 128, 144]
    for t in range(5):
        if CR[t] is None: continue
        for q in range(4):
            k(f'ds_read_b128 v[{CR[t]+4*q}:{CR[t]+4*q+3}], v{U+5} offset:{t*128 + q*32}')
    if g == 0:
        for q in range(4):
            k(f'ds_read_b128 v[{220+4*q}:{223+4*q}], v{U+8} offset:{q*32}')
            k(f'ds_read_b128 v[{236+4*q}:{239+4*q}], v{U+8} offset:{512 + q*32}')
    k(f'''
    s_lshl_b32 s{S_T}, s{S_RB}, 2
    s_add_u32 s{S_T}, s{S_T}, s{S_TT}                  ; toktile
    s_lshl_b32 s{S_T+1}, s{S_J}, 6
    s_add_u32 s{S_T+1}, s{S_T+1}, s{S_T}
    s_lshl_b32 s{S_T+2}, s{S_T+1}, 11
    s_add_u32 s{S_T+2}, s{S_T+2}, {WS_Q}
    s_lshl_b32 s{S_T+3}, s{S_T+1}, 12
    s_add_u32 s{S_T+3}, s{S_T+3}, {WS_KV}
    s_mul_i32 s{S_T+4}, s{S_T}, 112
    s_mul_i32 s{S_T+5}, s{S_J}, 7
    s_add_u32 s{S_T+4}, s{S_T+4}, s{S_T+5}
    s_lshl_b32 s{S_T+4}, s{S_T+4}, 10
    s_add_u32 s{S_T+4}, s{S_T+4}, {WS_H}
    s_waitcnt lgkmcnt(0)
    ''')
    def gu(t, gt):
        a = ACC + 16 * t; c = CR[t]
        for p in range(8):
            k(pk('v_pk_fma_f32', a + 2*p, c + 2*p, NMU, a + 2*p, bc=(1,)))
        for p in range(4):
            k(pk('v_pk_mul_f32', a + 2*p, a + 2*p, A1, bc=(1,)))
        for p in range(8):
            k(f'v_exp_f32 v{a+p}, v{a+p}')
        for p in range(4):
            k(pk('v_pk_fma_f32', a + 2*p, a + 2*p, SD, SD, bc=(1, 2)))
        for p in range(8):
            k(f'v_rcp_f32 v{a+p}, v{a+p}')
        for p in range(4):
            k(pk('v_pk_mul_f32', a + 2*p, a + 2*p, a + 8 + 2*p))
        for p in range(4):
            k(f'v_cvt_pk_bf16_f32 v{a+8+p}, v{a+2*p}, v{a+2*p+1}')
        s = S_T + 6 + (gt & 1)
        k(f'''
        s_add_u32 s{s}, s{S_T+4}, {gt*1024}
        buffer_store_dwordx4 v[{a+8}:{a+11}], v2, s[{S_WS}:{S_WS+3}], s{s} offen
        ''')
    if g == 1:
        for t in range(5): gu(t, t + 2)
    else:
        q = ACC; kk = ACC + 16; v = ACC + 32
        for p in range(8):
            k(pk('v_pk_fma_f32', q + 2*p, CR[0] + 2*p, NMU, q + 2*p, bc=(1,)))
            k(pk('v_pk_fma_f32', kk + 2*p, CR[1] + 2*p, NMU, kk + 2*p, bc=(1,)))
        for p in range(8):
            k(pk('v_pk_mul_f32', q + 2*p, q + 2*p, QS, bc=(1,)))
            k(pk('v_pk_mul_f32', kk + 2*p, kk + 2*p, RS, bc=(1,)))
        D0, D1 = 96, 98
        k(pk('v_pk_mul_f32', D0, q, kk))
        k(pk('v_pk_mul_f32', D1, q + 12, kk + 12))
        for p in range(1, 6):
            k(pk('v_pk_fma_f32', D0, q + 2*p, kk + 2*p, D0))
        k(pk('v_pk_fma_f32', D1, q + 14, kk + 14, D1))
        k(f'''
        v_add_f32 v{D0}, v{D0}, v{D0+1}
        v_add_f32 v{D1}, v{D1}, v{D1+1}
        v_cndmask_b32 v{D1}, v{D1}, 0, s[{S_HI}:{S_HI+1}]
        v_add_f32 v{D0}, v{D0}, v{D1}
        v_mov_b32 v{D1}, v{D0}
        v_permlane32_swap_b32 v{D0}, v{D1}
        v_add_f32 v{D0}, v{D0}, v{D1}                  ; m
        v_cvt_pk_bf16_f32 v{D1}, v{D0}, v{D0}
        v_lshlrev_b32 v{D1}, 16, v{D1}
        v_sub_f32 v{D1}, v{D0}, v{D1}                  ; residual
        v_cvt_pk_bf16_f32 v{D1}, -v{D0}, -v{D1}
        v_mov_b32 v{D0}, 0x3f803f80
        ''')
        for p in range(8):
            k(f'v_cvt_pk_bf16_f32 v{100+p}, v{q+2*p}, v{q+2*p+1}')
            k(f'v_cvt_pk_bf16_f32 v{108+p}, v{kk+2*p}, v{kk+2*p+1}')
        k(f'''
        v_cndmask_b32 v{106}, v{106}, v{D1}, s[{S_HI}:{S_HI+1}]
        v_cndmask_b32 v{107}, v{107}, 0, s[{S_HI}:{S_HI+1}]
        v_cndmask_b32 v{114}, v{114}, v{D0}, s[{S_HI}:{S_HI+1}]
        v_cndmask_b32 v{115}, v{115}, 0, s[{S_HI}:{S_HI+1}]
        buffer_store_dwordx4 v[100:103], v2, s[{S_WS}:{S_WS+3}], s{S_T+2} offen
        buffer_store_dwordx4 v[104:107], v2, s[{S_WS}:{S_WS+3}], s{S_T+2} offen offset:1024
        buffer_store_dwordx4 v[108:111], v2, s[{S_WS}:{S_WS+3}], s{S_T+3} offen
        buffer_store_dwordx4 v[112:115], v2, s[{S_WS}:{S_WS+3}], s{S_T+3} offen offset:1024
        ''')
        CV = U + 12 + 4
        assert CV % 2 == 0
        for p in range(8):
            k(pk('v_pk_fma_f32', v + 2*p, 220 + 2*p, CV, v + 2*p, bc=(1,)))
        for p in range(8):
            k(pk('v_pk_mul_f32', v + 2*p, v + 2*p, 236 + 2*p))
        k(f'''
        v_cmp_eq_u32 vcc, 28, v{U}
        v_cndmask_b32 v{U+2}, 0, v{D0}, vcc
        v_cmp_lt_u32 vcc, 27, v{U}
        ''')
        for p in range(8):
            k(f'v_cvt_pk_bf16_f32 v{116+p}, v{v+2*p}, v{v+2*p+1}')
        for p in range(8):
            k(f'v_cndmask_b32 v{116+p}, v{116+p}, v{U+2}, vcc')
        k(f'''
        buffer_store_dwordx4 v[116:119], v2, s[{S_WS}:{S_WS+3}], s{S_T+3} offen offset:2048
        buffer_store_dwordx4 v[120:123], v2, s[{S_WS}:{S_WS+3}], s{S_T+3} offen offset:3072
        ''')
        gu(3, 0); gu(4, 1)
    st(k, 'epi')
    if STAMPS: k('s_waitcnt vmcnt(0)')
    st(k, 'end'); stamp(k, 7, True)
    stamp_flush(k, S_WS, S_W, 8, WS_ST, 4)
    k('s_endpgm')

if __name__ == '__main__':
    for p in range(448): assert (p * 4682) >> 16 == p // 14
    for p in range(384): assert (p * 5462) >> 16 == p // 12
    for p in range(2048): assert (p * 9363) >> 20 == p // 112
    print(K1_LDS, len(gen_k1().text().split('\n')))
```

```python
import os
from kasm import *
from layout import *

K2_GRID = 256
K2_BLOCK = 512
K2_VGPR = 256
CMB = 0
RS_ = 272
PART = 49152
CNT = PART + 4 * 64 * RS_
K2_LDS = CNT + 64

S_WS, S_KV, S_KH = 24, 28, 32
S_W, S_HEAD, S_QB, S_X8, S_I = 36, 37, 38, 39, 40
S_K, S_V, S_CNT = 41, 42, 43
S_T = 44
S_HI = 60
S_O = 62
V_L, V_OFF = 1, 2
Q = 16
O = 48
S = [112, 128]
P = 144
KV = [152, 168, 184, 200]
T = 216

STP = os.environ.get('K2ST', 'bar0,loop,ebar,epi,end').split(',')
def st(k, name):
    if name in STP: stamp(k, 2 + STP.index(name))

def mf(d, a, b, c):
    cc = f'v[{c}:{c+15}]' if c is not None else '0'
    return f'v_mfma_f32_32x32x16_bf16 v[{d}:{d+15}], v[{a}:{a+3}], v[{b}:{b+3}], {cc}'

def ld(dst, srd, so, off):
    return f'buffer_load_dwordx4 v[{dst}:{dst+3}], v{V_OFF}, s[{srd}:{srd+3}], s{so} offen offset:{off}'

def attn_tile(k, kb, qt):
    t = kb * 4 + qt
    s = S[t & 1]; sn = S[(t + 1) & 1]
    pk_, pq = (kb, qt - 1) if qt > 0 else ((kb - 1) & 3, 3)
    nk, nq = (kb, qt + 1) if qt < 3 else ((kb + 1) & 3, 0)
    e = lambda i: f'v_exp_f32 v{s+i}, v{s+i}'
    c = lambda j: f'v_cvt_pk_bf16_f32 v{P+j}, v{s+2*j}, v{s+2*j+1}'
    c7p = f'v_cvt_pk_bf16_f32 v{P+7}, v{sn+14}, v{sn+15}'
    pv1p = mf(O + 16 * pq, KV[pk_] + 12, P + 4, O + 16 * pq)
    qk0 = mf(sn, KV[nk] + 0, Q + 8 * nq, None)
    qk1 = mf(sn, KV[nk] + 4, Q + 8 * nq + 4, sn)
    pv0 = mf(O + 16 * qt, KV[kb] + 8, P, O + 16 * qt)
    x1 = []; x2 = []; w_qk = []; w_pv = []
    if qt == 1:
        b = KV[(kb - 1) & 3]
        x1 = [ld(b + 8, S_KV, S_V, 2048)]; x2 = [ld(b + 12, S_KV, S_V, 3072), f's_add_u32 s{S_V}, s{S_V}, 4096']
    if qt == 3:
        b = KV[kb]
        w_qk = ['s_waitcnt vmcnt(10)']
        x1 = [ld(b + 0, S_KV, S_K, 0)]; x2 = [ld(b + 4, S_KV, S_K, 1024), f's_add_u32 s{S_K}, s{S_K}, 4096']
    if qt == 0:
        w_pv = ['s_waitcnt vmcnt(10)']
    seq = [e(0), c7p, e(1), e(2), pv1p, c(0), e(3), e(4), c(1), e(5)] + w_qk + [qk0, e(6), c(2), e(7)] + x1 + [e(8), c(3), e(9),
           qk1, e(10), c(4), e(11)] + x2[:1] + [e(12), c(5), e(13)] + w_pv + [pv0, e(14)] + x2[1:] + [c(6), e(15)]
    for x in seq: k(x)

def gen_attn(k):
    k(f'''
k2_attn:
    s_lshl_b32 s{S_HEAD}, s{S_X8}, 1
    s_lshr_b32 s{S_T}, s{S_I}, 4
    s_add_u32 s{S_HEAD}, s{S_HEAD}, s{S_T}
    s_and_b32 s{S_QB}, s{S_I}, 15
    s_lshl_b32 s{S_T}, s{S_HEAD}, 18
    s_add_u32 s{S_T}, s{S_T}, {WS_KV}
    s_lshl_b32 s{S_T+1}, s{S_W}, 16
    s_add_u32 s{S_T+1}, s{S_T+1}, s{S_T}
    s_lshl_b32 s{S_T+2}, s{S_HEAD}, 6
    s_lshl_b32 s{S_T+3}, s{S_QB}, 2
    s_add_u32 s{S_T+2}, s{S_T+2}, s{S_T+3}
    s_waitcnt lgkmcnt(0)
    s_mov_b32 s{S_WS}, s4
    s_mov_b32 s{S_WS+1}, s5
    s_mov_b32 s{S_WS+2}, {WS_SIZE}
    s_mov_b32 s{S_WS+3}, 0x20000
    s_add_u32 s{S_KV}, s4, s{S_T+1}
    s_addc_u32 s{S_KV+1}, s5, 0
    s_mov_b32 s{S_KV+2}, 65536
    s_mov_b32 s{S_KV+3}, 0x20000
    s_add_u32 s{S_KH}, s4, s{S_T}
    s_addc_u32 s{S_KH+1}, s5, 0
    s_mov_b32 s{S_KH+2}, {256*1024}
    s_mov_b32 s{S_KH+3}, 0x20000
    s_mov_b32 s{S_K}, 0
    ''')
    k(ld(KV[0], S_KV, S_K, 0)); k(ld(KV[0] + 4, S_KV, S_K, 1024))
    for i in range(4):
        k(f'''
        s_add_u32 s{S_T+4+i}, s{S_W}, {i}
        s_and_b32 s{S_T+4+i}, s{S_T+4+i}, 3
        s_add_u32 s{S_T+4+i}, s{S_T+4+i}, s{S_T+2}
        s_lshl_b32 s{S_T+4+i}, s{S_T+4+i}, 11
        ''')
        k(ld(Q + 8 * i, S_WS, S_T + 4 + i, 0)); k(ld(Q + 8 * i + 4, S_WS, S_T + 4 + i, 1024))
    k(ld(KV[0] + 8, S_KV, S_K, 2048)); k(ld(KV[0] + 12, S_KV, S_K, 3072))
    for b in (1, 2, 3):
        k(f's_add_u32 s{S_K}, s{S_K}, 4096')
        k(ld(KV[b], S_KV, S_K, 0)); k(ld(KV[b] + 4, S_KV, S_K, 1024))
        if b < 3:
            k(ld(KV[b] + 8, S_KV, S_K, 2048)); k(ld(KV[b] + 12, S_KV, S_K, 3072))
    k(f'''
    s_mov_b32 s{S_V}, s{S_K}
    s_add_u32 s{S_K}, s{S_K}, 4096
    s_mov_b32 s{S_CNT}, 4
    s_lshl_b32 s{S_O}, s{S_QB}, 2
    s_add_u32 s{S_O}, s{S_O}, s{S_W}
    s_lshl_b32 s{S_O}, s{S_O}, 4
    s_add_u32 s{S_O}, s{S_O}, s{S_HEAD}
    s_lshl_b32 s{S_O}, s{S_O}, 11
    s_add_u32 s{S_O}, s{S_O}, {WS_O}
    ''')
    for r in range(O, O + 64): k(f'v_mov_b32 v{r}, 0')
    for r in list(range(P + 4, P + 8)) + list(range(KV[3] + 12, KV[3] + 16)) + [S[1] + 14, S[1] + 15]:
        k(f'v_mov_b32 v{r}, 0')
    k('s_barrier')
    k('s_waitcnt vmcnt(18)')
    st(k, 'bar0')
    k(mf(S[0], KV[0], Q, None)); k(mf(S[0], KV[0] + 4, Q + 4, S[0]))
    k('s_waitcnt vmcnt(12)')
    k('k2_aloop:')
    for kb in range(4):
        for qt in range(4):
            attn_tile(k, kb, qt)
    k(f'''
    s_sub_u32 s{S_CNT}, s{S_CNT}, 1
    s_cmp_lg_u32 s{S_CNT}, 0
    s_cbranch_scc1 k2_aloop
    v_cvt_pk_bf16_f32 v{P+7}, v{S[1]+14}, v{S[1]+15}
    ''')
    k(mf(O + 48, KV[3] + 12, P + 4, O + 48))
    st(k, 'loop')
    for i in (1, 2, 3):
        k(f'''
        s_add_u32 s{S_T}, s{S_W}, {i}
        s_and_b32 s{S_T}, s{S_T}, 3
        s_mul_i32 s{S_T}, s{S_T}, {3*4096}
        s_add_u32 s{S_T}, s{S_T}, {CMB + (i-1)*4096}
        v_add_u32 v{T+i}, s{S_T}, v{V_OFF}
        ''')
        for q in range(4):
            k(f'ds_write_b128 v{T+i}, v[{O+16*i+4*q}:{O+16*i+4*q+3}] offset:{q*1024}')
    k(f'''
    s_mul_i32 s{S_T}, s{S_W}, {3*4096}
    s_add_u32 s{S_T}, s{S_T}, {CMB}
    v_add_u32 v{T}, s{S_T}, v{V_OFF}
    s_waitcnt lgkmcnt(0)
    s_barrier
    ''')
    st(k, 'ebar')
    for j in range(12):
        k(f'ds_read_b128 v[{O+16+4*j}:{O+19+4*j}], v{T} offset:{j*1024}')
    for s_ in range(3):
        for q in range(4):
            k(f's_waitcnt lgkmcnt({11 - (4*s_+q)})')
            for r in range(4):
                k(f'v_add_f32 v{O+4*q+r}, v{O+4*q+r}, v{O+16+16*s_+4*q+r}')
    k(f'''
    v_mov_b32 v{T}, v{O+12}
    v_mov_b32 v{T+1}, v{O+12}
    v_permlane32_swap_b32 v{T}, v{T+1}
    v_mul_f32 v{T+2}, 0, v{O}
    ''')
    for r in range(1, 16):
        k(f'v_fmac_f32 v{T+2}, 0, v{O+r}')
    k(f'''
    v_add_f32 v{T+2}, v{T+2}, v{T+1}
    v_cmp_nle_f32 vcc, {flt(2.0**-60)}, v{T+2}
    v_cmp_nge_f32 s[{S_T}:{S_T+1}], {flt(2.0**60)}, v{T+2}
    ''')
    k.lines.pop()
    k(f'''
    v_mov_b32 v{T+3}, {flt(2.0**60)}
    v_cmp_nge_f32 s[{S_T}:{S_T+1}], v{T+3}, v{T+2}
    s_or_b64 vcc, vcc, s[{S_T}:{S_T+1}]
    s_cbranch_vccnz k2_slow
k2_norm:
    v_rcp_f32 v{T+1}, v{T+1}
    ''')
    for r in range(16):
        k(f'v_mul_f32 v{O+r}, v{O+r}, v{T+1}')
    for j in range(8):
        k(f'v_cvt_pk_bf16_f32 v{P+j}, v{O+2*j}, v{O+2*j+1}')
    k(f'''
    v_cndmask_b32 v{P+6}, v{P+6}, 0, s[{S_HI}:{S_HI+1}]
    v_cndmask_b32 v{P+7}, v{P+7}, 0, s[{S_HI}:{S_HI+1}]
    buffer_store_dwordx4 v[{P}:{P+3}], v{V_OFF}, s[{S_WS}:{S_WS+3}], s{S_O} offen
    buffer_store_dwordx4 v[{P+4}:{P+7}], v{V_OFF}, s[{S_WS}:{S_WS+3}], s{S_O} offen offset:1024
    ''')
    st(k, 'epi')
    if STAMPS: k('s_waitcnt vmcnt(0)')
    st(k, 'end'); stamp(k, 7, True)
    stamp_flush(k, S_WS, S_W, 8, WS_ST + 2048 * 64, 4)
    k('s_endpgm')
    s = S[0]; b = KV[0]; M = T + 4
    k(f'''
k2_slow:
    v_mov_b32 v{M}, 0xff800000
    s_mov_b32 s{S_K}, 0
k2_slow1:
    ''')
    k(ld(b, S_KH, S_K, 0)); k(ld(b + 4, S_KH, S_K, 1024))
    k('s_waitcnt vmcnt(0)')
    k(mf(s, b, Q, None)); k(mf(s, b + 4, Q + 4, s))
    for j in range(8):
        k(f'v_max3_f32 v{M}, v{M}, v{s+2*j}, v{s+2*j+1}')
    k(f'''
    s_add_u32 s{S_K}, s{S_K}, 4096
    s_cmp_lt_u32 s{S_K}, {64*4096}
    s_cbranch_scc1 k2_slow1
    v_mov_b32 v{M+1}, v{M}
    v_permlane32_swap_b32 v{M}, v{M+1}
    v_max_f32 v{M}, v{M}, v{M+1}
    s_mov_b32 s{S_K}, 0
    ''')
    for r in range(16): k(f'v_mov_b32 v{O+r}, 0')
    k('k2_slow2:')
    for i in range(4): k(ld(b + 4 * i, S_KH, S_K, 1024 * i))
    k('s_waitcnt vmcnt(0)')
    k(mf(s, b, Q, None)); k(mf(s, b + 4, Q + 4, s))
    for r in range(16): k(f'v_sub_f32 v{s+r}, v{s+r}, v{M}')
    for r in range(16): k(f'v_exp_f32 v{s+r}, v{s+r}')
    for j in range(8): k(f'v_cvt_pk_bf16_f32 v{P+j}, v{s+2*j}, v{s+2*j+1}')
    k(mf(O, b + 8, P, O)); k(mf(O, b + 12, P + 4, O))
    k(f'''
    s_add_u32 s{S_K}, s{S_K}, 4096
    s_cmp_lt_u32 s{S_K}, {64*4096}
    s_cbranch_scc1 k2_slow2
    v_mov_b32 v{T}, v{O+12}
    v_mov_b32 v{T+1}, v{O+12}
    v_permlane32_swap_b32 v{T}, v{T+1}
    s_branch k2_norm
    ''')

ACC = 16
GB = 80
GD = int(os.environ.get('K2GD', '6'))
def gen_gemm(k):
    SH0, SH1, SW0, SW1 = 41, 42, 43, 63
    k(f'''
k2_gemm:
    s_sub_u32 s{S_T}, s{S_W}, 4                    ; kq
    s_mul_i32 s{S_T+1}, s{S_I}, 37
    s_lshr_b32 s{S_T+1}, s{S_T+1}, 8               ; i / 7
    s_mul_i32 s{S_T+2}, s{S_T+1}, 7
    s_sub_u32 s{S_T+2}, s{S_I}, s{S_T+2}           ; np
    s_lshl_b32 s{S_T+3}, s{S_X8}, 2
    s_add_u32 s{S_T+1}, s{S_T+1}, s{S_T+3}         ; tp
    s_mul_i32 s{S_T+3}, s{S_T}, {28*1024}
    s_mul_i32 s{SH0}, s{S_T+1}, {2*112*1024}
    s_add_u32 s{SH0}, s{SH0}, s{S_T+3}
    s_add_u32 s{SH0}, s{SH0}, {WS_H}
    s_add_u32 s{SH1}, s{SH0}, {112*1024}
    s_mul_i32 s{SW0}, s{S_T+2}, {2*112*1024}
    s_add_u32 s{SW0}, s{SW0}, s{S_T+3}
    s_add_u32 s{SW0}, s{SW0}, {WS_WD}
    s_add_u32 s{SW1}, s{SW0}, {112*1024}
    v_mov_b32 v3, {CNT}
    v_mov_b32 v4, 0
    ds_write_b32 v3, v4
    s_waitcnt lgkmcnt(0)
    s_mov_b32 s{S_WS}, s4
    s_mov_b32 s{S_WS+1}, s5
    s_mov_b32 s{S_WS+2}, {WS_SIZE}
    s_mov_b32 s{S_WS+3}, 0x20000
    s_cmp_lt_u32 s{S_I}, 28
    s_cbranch_scc1 k2_gemm_go
    s_barrier
    s_endpgm
k2_gemm_go:
    ''')
    def loads(sl):
        b = GB + 16 * (sl % GD)
        out = [ld(b + 4 * i, S_WS, so, (sl & 3) * 1024) for i, so in enumerate((SW0, SH0, SH1, SW1))]
        if sl & 3 == 3:
            out += [f's_add_u32 s{so}, s{so}, 4096' for so in (SW0, SH0, SH1, SW1)]
        return out
    for sl in range(GD):
        for x in loads(sl): k(x)
    k('s_barrier')
    st(k, 'bar0')
    for sl in range(28):
        b = GB + 16 * (sl % GD)
        later = min(GD - 1, 27 - sl)
        w0, h0, h1, w1 = b, b + 4, b + 8, b + 12
        c = lambda i: (ACC + 16 * i) if sl else None
        k(f's_waitcnt vmcnt({4*later + 2})')
        k(mf(ACC + 0, w0, h0, c(0)))
        k(f's_waitcnt vmcnt({4*later + 1})')
        k(mf(ACC + 16, w0, h1, c(1)))
        k(f's_waitcnt vmcnt({4*later})')
        k(mf(ACC + 32, w1, h0, c(2)))
        k(mf(ACC + 48, w1, h1, c(3)))
        if sl + GD < 28:
            for x in loads(sl + GD): k(x)
    st(k, 'loop')
    k(f'''
    v_and_b32 v3, 31, v{V_L}
    v_lshrrev_b32 v4, 5, v{V_L}
    v_mul_u32_u24 v3, {RS_}, v3
    v_lshl_add_u32 v3, v4, 4, v3
    s_mul_i32 s{S_T+3}, s{S_T}, {64*RS_}
    s_add_u32 s{S_T+3}, s{S_T+3}, {PART}
    v_add_u32 v3, s{S_T+3}, v3
    ''')
    for i in range(4):
        nt, tt = i >> 1, i & 1
        for q in range(4):
            k(f'ds_write_b128 v3, v[{ACC+16*i+4*q}:{ACC+16*i+4*q+3}] offset:{tt*32*RS_ + nt*128 + q*32}')
    k(f'''
    v_subrev_u32 v5, 256, v0
    v_lshrrev_b32 v6, 4, v5
    v_and_b32 v5, 15, v5
    v_mul_u32_u24 v7, {RS_}, v6
    v_lshl_add_u32 v7, v5, 4, v7
    v_add_u32 v7, {PART}, v7
    v_mul_u32_u24 v8, {448*4}, v6
    v_lshl_add_u32 v8, v5, 4, v8                   ; G voffset
    s_mul_i32 s{S_T+4}, s{S_T+1}, {64*448*4}
    s_lshl_b32 s{S_T+5}, s{S_T+2}, 8
    s_add_u32 s{S_T+4}, s{S_T+4}, s{S_T+5}
    s_add_u32 s{S_T+4}, s{S_T+4}, {WS_G}
    v_mov_b32 v3, {CNT}
    v_mov_b32 v4, 1
    s_waitcnt lgkmcnt(0)
    s_mov_b64 exec, 1
    ds_add_u32 v3, v4
    s_mov_b64 exec, -1
k2_spin:
    ds_read_b32 v4, v3
    s_waitcnt lgkmcnt(0)
    v_readfirstlane_b32 s{S_T+5}, v4
    s_cmp_ge_u32 s{S_T+5}, 4
    s_cbranch_scc1 k2_red
    s_sleep 2
    s_branch k2_spin
k2_red:
    ''')
    st(k, 'ebar')
    R = 16
    for p in range(4):
        for w in range(4):
            off = w * 64 * RS_ + p * 16 * RS_
            k(f'ds_read_b128 v[{R+16*p+4*w}:{R+16*p+4*w+3}], v7 offset:{off}')
    for p in range(4):
        a = R + 16 * p
        k(f's_waitcnt lgkmcnt({12 - 4*p})')
        for r in range(4):
            k(f'v_add_f32 v{a+r}, v{a+r}, v{a+4+r}')
            k(f'v_add_f32 v{a+8+r}, v{a+8+r}, v{a+12+r}')
        for r in range(4):
            k(f'v_add_f32 v{a+r}, v{a+r}, v{a+8+r}')
        for r in range(4):
            k(f'v_mul_f32 v{a+4+r}, {flt(-LOG2E)}, v{a+r}')
        for r in range(4):
            k(f'v_exp_f32 v{a+4+r}, v{a+4+r}')
        for r in range(4):
            k(f'v_add_f32 v{a+4+r}, 1.0, v{a+4+r}')
        for r in range(4):
            k(f'v_rcp_f32 v{a+4+r}, v{a+4+r}')
        for r in range(4):
            k(f'v_mul_f32 v{a+r}, v{a+r}, v{a+4+r}')
        k(f'''
        buffer_store_dwordx4 v[{a}:{a+3}], v8, s[{S_WS}:{S_WS+3}], s{S_T+4} offen
        s_add_u32 s{S_T+4}, s{S_T+4}, {16*448*4}
        ''')
    st(k, 'epi')
    if STAMPS: k('s_waitcnt vmcnt(0)')
    st(k, 'end'); stamp(k, 7, True)
    stamp_flush(k, S_WS, S_W, 8, WS_ST + 2048 * 64, 4)
    k('s_endpgm')

def gen_k2():
    k = K()
    k(f'''
    s_cmp_ge_u32 s2, 256
    s_cbranch_scc1 k2_end
    s_load_dwordx2 s[4:5], s[0:1], 72
    v_lshrrev_b32 v2, 6, v0
    v_and_b32 v{V_L}, 63, v0
    v_readfirstlane_b32 s{S_W}, v2
    v_lshlrev_b32 v{V_OFF}, 4, v{V_L}
    s_and_b32 s{S_X8}, s2, 7
    s_lshr_b32 s{S_I}, s2, 3
    s_mov_b32 s{S_HI}, 0
    s_mov_b32 s{S_HI+1}, -1
    ''')
    stamp(k, 0, True); stamp(k, 1)
    k(f'''
    s_cmp_ge_u32 s{S_W}, 4
    s_cbranch_scc1 k2_gemm
    ''')
    gen_attn(k)
    gen_gemm(k)
    k('''
k2_end:
    s_endpgm
    ''')
    return k

if __name__ == '__main__':
    for i in range(32): assert (i * 37) >> 8 == i // 7
    print(K2_LDS, len(gen_k2().text().split('\n')))
```

```python
import os
from kasm import *
from layout import *

K3_GRID = 224
K3_BLOCK = 256
K3_VGPR = 256
RS_ = 272
K3_LDS = 4 * 64 * RS_

S_WS, S_XS, S_OUT = 24, 28, 32
S_W = 36
S_T = 44
V_L, V_OFF = 1, 2
ACC = 16
B = 80
GX = 208

STP = os.environ.get('K3ST', 'ld,loop,ebar,epi,end').split(',')
def st(k, name):
    if name in STP: stamp(k, 2 + STP.index(name))

def mf(d, a, b, c):
    cc = f'v[{c}:{c+15}]' if c is not None else '0'
    return f'v_mfma_f32_32x32x16_bf16 v[{d}:{d+15}], v[{a}:{a+3}], v[{b}:{b+3}], {cc}'

def gen_k3():
    k = K()
    SO0, SO1, SW0, SW1 = 37, 38, 39, 40
    k(f'''
    s_cmp_ge_u32 s2, {K3_GRID}
    s_cbranch_scc1 k3_end
    s_load_dwordx2 s[4:5], s[0:1], 0
    s_load_dwordx2 s[6:7], s[0:1], 56
    s_load_dwordx2 s[8:9], s[0:1], 72
    v_lshrrev_b32 v2, 6, v0
    v_and_b32 v{V_L}, 63, v0
    v_readfirstlane_b32 s{S_W}, v2
    v_lshlrev_b32 v{V_OFF}, 4, v{V_L}
    ''')
    stamp(k, 0, True); stamp(k, 1)
    k(f'''
    s_and_b32 s{S_T+3}, s2, 7
    s_lshr_b32 s{S_T}, s2, 3                       ; i
    s_mul_i32 s{S_T+1}, s{S_T}, 37
    s_lshr_b32 s{S_T+1}, s{S_T+1}, 8               ; i / 7
    s_mul_i32 s{S_T+2}, s{S_T+1}, 7
    s_sub_u32 s{S_T+2}, s{S_T}, s{S_T+2}           ; np
    s_lshl_b32 s{S_T+3}, s{S_T+3}, 2
    s_add_u32 s{S_T+1}, s{S_T+1}, s{S_T+3}         ; tp
    s_lshl_b32 s{S_T+3}, s{S_W}, 13
    s_lshl_b32 s{SO0}, s{S_T+1}, 16
    s_add_u32 s{SO0}, s{SO0}, s{S_T+3}
    s_add_u32 s{SO0}, s{SO0}, {WS_O}
    s_add_u32 s{SO1}, s{SO0}, 32768
    s_lshl_b32 s{SW0}, s{S_T+2}, 16
    s_add_u32 s{SW0}, s{SW0}, s{S_T+3}
    s_add_u32 s{SW0}, s{SW0}, {WS_WO}
    s_add_u32 s{SW1}, s{SW0}, 32768
    v_lshrrev_b32 v6, 4, v0
    v_and_b32 v5, 15, v0
    v_mul_u32_u24 v7, {RS_}, v6
    v_lshl_add_u32 v7, v5, 4, v7
    v_mul_u32_u24 v8, {448*4}, v6
    v_lshl_add_u32 v8, v5, 4, v8                   ; G voffset
    v_lshrrev_b32 v9, 1, v8
    s_mul_i32 s{S_T+4}, s{S_T+1}, {64*448*2}
    s_lshl_b32 s{S_T+5}, s{S_T+2}, 7
    s_add_u32 s{S_T+4}, s{S_T+4}, s{S_T+5}
    s_lshl_b32 s{S_T+5}, s{S_T+4}, 1
    s_add_u32 s{S_T+5}, s{S_T+5}, {WS_G}           ; G soffset
    s_waitcnt lgkmcnt(0)
    s_mov_b32 s{S_WS}, s8
    s_mov_b32 s{S_WS+1}, s9
    s_mov_b32 s{S_WS+2}, {WS_SIZE}
    s_mov_b32 s{S_WS+3}, 0x20000
    s_mov_b32 s{S_XS}, s4
    s_mov_b32 s{S_XS+1}, s5
    s_mov_b32 s{S_XS+2}, {2048*448*2}
    s_mov_b32 s{S_XS+3}, 0x20000
    s_mov_b32 s{S_OUT}, s6
    s_mov_b32 s{S_OUT+1}, s7
    s_mov_b32 s{S_OUT+2}, {2048*448*2}
    s_mov_b32 s{S_OUT+3}, 0x20000
    ''')
    for sl in range(8):
        b = B + 16 * sl
        for i, so in enumerate((SW0, SO0, SO1, SW1)):
            k(f'buffer_load_dwordx4 v[{b+4*i}:{b+4*i+3}], v{V_OFF}, s[{S_WS}:{S_WS+3}], s{so} offen offset:{(sl&3)*1024}')
        if sl == 3:
            for so in (SW0, SO0, SO1, SW1): k(f's_add_u32 s{so}, s{so}, 4096')
    for p in range(4):
        k(f'''
        s_add_u32 s{S_T+6}, s{S_T+5}, {p*16*448*4}
        s_add_u32 s{S_T+8+p}, s{S_T+4}, {p*16*448*2}
        buffer_load_dwordx4 v[{GX+4*p}:{GX+4*p+3}], v8, s[{S_WS}:{S_WS+3}], s{S_T+6} offen
        buffer_load_dwordx2 v[{GX+16+2*p}:{GX+17+2*p}], v9, s[{S_XS}:{S_XS+3}], s{S_T+8+p} offen
        ''')
    k(f'''
    v_and_b32 v3, 31, v{V_L}
    v_lshrrev_b32 v4, 5, v{V_L}
    v_mul_u32_u24 v3, {RS_}, v3
    v_lshl_add_u32 v3, v4, 4, v3
    s_mul_i32 s{S_T+3}, s{S_W}, {64*RS_}
    v_add_u32 v3, s{S_T+3}, v3
    ''')
    st(k, 'ld')
    for sl in range(8):
        b = B + 16 * sl
        later = 4 * (7 - sl) + 8
        w0, h0, h1, w1 = b, b + 4, b + 8, b + 12
        c = lambda i: (ACC + 16 * i) if sl else None
        k(f's_waitcnt vmcnt({later + 2})')
        k(mf(ACC + 0, w0, h0, c(0)))
        k(f's_waitcnt vmcnt({later + 1})')
        k(mf(ACC + 16, w0, h1, c(1)))
        k(f's_waitcnt vmcnt({later})')
        k(mf(ACC + 32, w1, h0, c(2)))
        k(mf(ACC + 48, w1, h1, c(3)))
    st(k, 'loop')
    for i in range(4):
        nt, tt = i >> 1, i & 1
        for q in range(4):
            k(f'ds_write_b128 v3, v[{ACC+16*i+4*q}:{ACC+16*i+4*q+3}] offset:{tt*32*RS_ + nt*128 + q*32}')
    k('''
    s_waitcnt lgkmcnt(0)
    s_barrier
    ''')
    st(k, 'ebar')
    R = 16
    for p in range(4):
        for w in range(4):
            off = w * 64 * RS_ + p * 16 * RS_
            k(f'ds_read_b128 v[{R+16*p+4*w}:{R+16*p+4*w+3}], v7 offset:{off}')
    k('s_waitcnt vmcnt(0)')
    for p in range(4):
        a = R + 16 * p; g = GX + 4 * p; x = GX + 16 + 2 * p
        k(f's_waitcnt lgkmcnt({12 - 4*p})')
        for r in range(4):
            k(f'v_add_f32 v{a+r}, v{a+r}, v{a+4+r}')
            k(f'v_add_f32 v{a+8+r}, v{a+8+r}, v{a+12+r}')
        for r in range(4):
            k(f'v_add_f32 v{a+r}, v{a+r}, v{a+8+r}')
        k(f'''
        v_lshlrev_b32 v{a+4}, 16, v{x}
        v_and_b32 v{a+5}, 0xffff0000, v{x}
        v_lshlrev_b32 v{a+6}, 16, v{x+1}
        v_and_b32 v{a+7}, 0xffff0000, v{x+1}
        ''')
        for r in range(4):
            k(f'v_fmac_f32 v{a+4+r}, v{a+r}, v{g+r}')
        k(f'''
        v_cvt_pk_bf16_f32 v{a+8}, v{a+4}, v{a+5}
        v_cvt_pk_bf16_f32 v{a+9}, v{a+6}, v{a+7}
        buffer_store_dwordx2 v[{a+8}:{a+9}], v9, s[{S_OUT}:{S_OUT+3}], s{S_T+8+p} offen
        ''')
    st(k, 'epi')
    if STAMPS: k('s_waitcnt vmcnt(0)')
    st(k, 'end'); stamp(k, 7, True)
    stamp_flush(k, S_WS, S_W, 4, WS_ST + 4096 * 64, 4)
    k('''
k3_end:
    s_endpgm
    ''')
    return k
```

```python
import re

TRANS = ('v_exp_f32','v_log_f32','v_rcp_f32','v_rsq_f32','v_sqrt_f32','v_sin_f32','v_cos_f32',
         'v_exp_f16','v_log_f16','v_rcp_f16','v_rsq_f16','v_sqrt_f16','v_rcp_iflag_f32')

def mfma_passes(op):
    if '32x32x16' in op or '32x32x8' in op: return 8
    if '16x16x32' in op or '16x16x16' in op: return 4
    if '4x4x4' in op: return 2
    raise ValueError(op)

_reg_re = re.compile(r'^(-|\|)?([vas])(\d+)\|?$')
_rng_re = re.compile(r'^(-|\|)?([vas])\[(\d+):(\d+)\]\|?$')

def regs_of(tok):
    tok = tok.strip()
    if tok.startswith('neg(') or tok.startswith('abs('):
        tok = tok[4:-1]
    m = _reg_re.match(tok)
    if m: return {(m.group(2), int(m.group(3)))}
    m = _rng_re.match(tok)
    if m: return {(m.group(2), i) for i in range(int(m.group(3)), int(m.group(4)) + 1)}
    if tok in ('vcc', 'vcc_lo', 'vcc_hi'): return {('vcc', 0)}
    if tok in ('exec', 'exec_lo', 'exec_hi'): return {('exec', 0)}
    if tok == 'm0': return {('m0', 0)}
    return set()

class Ins:
    __slots__ = ('text','op','ops','mods','kind','defs','uses','label','target','ws','A','B','C','D','passes',
                 'trans','dot','perm','dpp','rdl','seldst','lds','wide_store','sdata','cmaskuse')
    def __init__(self, text):
        self.text = text
        t = text.split(';')[0].strip()
        self.label = None; self.target = None; self.kind = 'other'
        self.defs = set(); self.uses = set(); self.ws = 1
        self.A = self.B = self.C = self.D = set(); self.passes = 0
        self.trans = self.dot = self.perm = self.dpp = self.rdl = self.seldst = self.lds = False
        self.wide_store = False; self.sdata = set(); self.op = ''; self.ops = []; self.mods = ''
        if not t or t.startswith('.'):
            self.kind = 'none'; self.ws = 0; return
        if t.endswith(':'):
            self.kind = 'label'; self.label = t[:-1]; self.ws = 0; return
        sp = t.split(None, 1)
        op = sp[0]; rest = sp[1] if len(sp) > 1 else ''
        parts = []; depth = 0; cur = ''
        for ch in rest:
            if ch == '[': depth += 1
            if ch == ']': depth -= 1
            if ch == ',' and depth == 0:
                parts.append(cur); cur = ''
            else: cur += ch
        if cur.strip(): parts.append(cur)
        mods = ''
        if parts:
            last = parts[-1].strip().split(None, 1)
            parts[-1] = last[0]
            if len(last) > 1: mods = last[1]
        parts = [p.strip() for p in parts]
        base = op
        for suf in ('_e32', '_e64', '_dpp', '_sdwa'):
            if base.endswith(suf): base = base[:-len(suf)]
        self.op = base; self.ops = parts; self.mods = mods
        R = [regs_of(p) for p in parts]
        allr = set().union(*R) if R else set()
        if base == 's_nop':
            self.kind = 'nop'; self.ws = int(parts[0], 0) + 1; return
        if base.startswith('v_mfma') or base.startswith('v_smfmac'):
            self.kind = 'mfma'; self.passes = mfma_passes(base)
            self.D, self.A, self.B, self.C = R[0], R[1], R[2], R[3]
            self.defs = set(R[0]); self.uses = R[1] | R[2] | R[3]; return
        if base.startswith('v_'):
            self.kind = 'valu'
            self.trans = base in TRANS
            self.dot = base.startswith('v_dot')
            self.perm = base.startswith('v_permlane')
            self.dpp = ('row_' in mods or 'quad_perm' in mods or 'wave_' in mods or op.endswith('_dpp'))
            self.rdl = base in ('v_readlane_b32', 'v_readfirstlane_b32', 'v_writelane_b32')
            self.seldst = op.endswith('_sdwa') or ('op_sel:' in mods and not base.startswith('v_pk') and not base.startswith('v_dot'))
            if base.startswith('v_cmpx'):
                self.defs = {('exec', 0)} | R[0]; self.uses = set().union(*R[1:])
            elif base.startswith('v_cmp'):
                self.defs = set(R[0]); self.uses = set().union(*R[1:])
            elif self.perm and 'swap' in base or base == 'v_swap_b32':
                self.defs = R[0] | R[1]; self.uses = R[0] | R[1]
            elif base in ('v_add_co_u32','v_sub_co_u32','v_subrev_co_u32','v_addc_co_u32','v_subb_co_u32','v_div_scale_f32','v_mad_u64_u32'):
                self.defs = R[0] | R[1]; self.uses = set().union(*R[2:])
            else:
                self.defs = set(R[0]); self.uses = set().union(*R[1:]) if len(R) > 1 else set()
                if base.startswith(('v_fmac', 'v_mac', 'v_dot2c', 'v_dot4c', 'v_writelane', 'v_pk_fmac')) or self.dpp or op.endswith('_sdwa'):
                    self.uses |= R[0]
            return
        if base.startswith(('buffer_', 'global_', 'flat_')):
            self.kind = 'vmem'
            self.lds = (' lds' in ' ' + mods) or 'load_lds' in base
            if 'load' in base and not self.lds:
                self.defs = set(R[0]); self.uses = set().union(*R[1:])
            else:
                self.uses = allr
                if self.lds: self.uses |= {('m0', 0)}
                if 'store' in base and ('x3' in base or 'x4' in base):
                    self.wide_store = True
                    self.sdata = R[0] if base.startswith('buffer_') else R[1]
                if 'atomic' in base and ('sc0' in mods or 'glc' in mods):
                    self.defs = set(R[0])
            return
        if base.startswith('ds_'):
            self.kind = 'ds'
            if base.startswith(('ds_read', 'ds_bpermute', 'ds_permute', 'ds_swizzle')) or '_rtn' in base:
                self.defs = set(R[0]); self.uses = set().union(*R[1:])
            else:
                self.uses = allr
            return
        if base.startswith('s_'):
            self.kind = 'salu'
            if base in ('s_branch',) or base.startswith('s_cbranch'):
                self.kind = 'branch'; self.target = parts[0]; return
            if base.startswith(('s_cmp', 's_bitcmp', 's_waitcnt', 's_barrier', 's_setprio', 's_endpgm', 's_sleep', 's_sethalt')):
                self.uses = allr; return
            if base.startswith(('s_load', 's_buffer_load', 's_memtime', 's_memrealtime')):
                self.kind = 'smem'
            self.defs = set(R[0]) if R else set(); self.uses = set().union(*R[1:]) if len(R) > 1 else set()
            if 'saveexec' in base: self.defs |= {('exec', 0)}
            return
        raise ValueError('unknown instruction: ' + text)

def _isv(s): return {r for r in s if r[0] in 'va' and r[0] != 'vcc'}
def _iss(s): return {r for r in s if r[0] in ('s', 'vcc')}

T_SAME = {2: 2, 4: 0, 8: 0}
T_OVL = {2: 4, 4: 6, 8: 10}
T_AB = {2: 5, 4: 8, 8: 12}
T_WAR = {2: 1, 4: 3, 8: 7}

def required(p, c):
    n = 0
    if p.kind == 'valu':
        vd = _isv(p.defs); sd = _iss(p.defs)
        if c.kind == 'mfma' and vd & c.uses: n = max(n, 3 if p.dot else 2)
        if c.kind == 'valu':
            if vd & c.uses:
                if p.trans and not c.trans: n = max(n, 1)
                if p.trans and c.trans: n = max(n, 1)
                if c.perm or c.dpp: n = max(n, 2)
                if c.rdl: n = max(n, 1)
                if p.seldst: n = max(n, 1)
                if p.dot and not (c.op == p.op and not (vd & set().union(*[regs_of(x) for x in c.ops[1:3]]))): n = max(n, 3)
            if p.seldst and vd & c.defs: n = max(n, 1)
            if p.dot and vd & c.defs and c.op != p.op: n = max(n, 3)
            if sd & c.uses:
                n = max(n, 4 if c.rdl else 2)
            if ('exec', 0) in p.defs:
                if c.dpp: n = max(n, 5)
                if c.rdl or c.perm: n = max(n, 4)
                if ('exec', 0) in c.uses: n = max(n, 2)
        if c.kind == 'mfma' and ('exec', 0) in p.defs: n = max(n, 4)
        if c.kind == 'vmem' and sd & c.uses: n = max(n, 5)
        if c.kind in ('salu', 'branch', 'smem') and sd & c.uses: n = max(n, 2)
        if c.kind == 'branch' and ('vcc', 0) in sd and 'vcc' in c.op: n = max(n, 5)
        if c.kind in ('vmem', 'ds') and p.trans and vd & c.uses: n = max(n, 1)
        if c.kind in ('vmem', 'ds') and p.dot and vd & c.uses: n = max(n, 3)
    if p.kind == 'mfma':
        D = p.D
        if c.kind == 'mfma':
            if D & c.C:
                if c.C == D and c.passes == p.passes: n = max(n, T_SAME[p.passes])
                else: n = max(n, T_OVL[p.passes])
            if D & (c.A | c.B): n = max(n, T_AB[p.passes])
            if D & c.D and not (D & c.C) and c.passes != p.passes: n = max(n, T_AB[p.passes])
        elif c.kind in ('valu', 'vmem', 'ds'):
            if D & (c.uses | c.defs): n = max(n, T_AB[p.passes])
        if c.kind == 'valu' and p.C & c.defs: n = max(n, T_WAR[p.passes])
        if c.kind in ('vmem', 'ds') and p.C & c.defs: n = max(n, T_WAR[p.passes])
    if p.kind == 'salu' and ('m0', 0) in p.defs:
        if (c.kind == 'vmem' and c.lds) or (c.kind == 'ds' and 'addtid' in c.op): n = max(n, 1)
    if p.kind == 'salu' and ('exec', 0) in p.defs:
        pass
    if p.kind == 'vmem' and p.wide_store and p.sdata & c.defs:
        n = max(n, 2 if c.kind in ('valu', 'mfma') else 1)
    return n

WIN = 24

def _need(prev, c):
    dist = 0; need = 0
    for p in reversed(prev):
        if p.ws == 0: continue
        r = required(p, c)
        if r > dist: need = max(need, r - dist)
        dist += p.ws
        if dist >= WIN: break
    return need

def nops(n):
    out = []
    while n > 0:
        k = min(n, 16); out.append(Ins(f'    s_nop {k-1}')); n -= k
    return out

def hazard_pass(lines):
    ins = [Ins(l) for l in lines]
    out = []
    for c in ins:
        if c.ws and c.kind != 'nop':
            n = _need(out[-64:], c)
            if n: out += nops(n)
        out.append(c)
    changed = True
    while changed:
        changed = False
        pos = {x.label: i for i, x in enumerate(out) if x.kind == 'label'}
        for i, b in enumerate(out):
            if b.kind != 'branch': continue
            t = pos[b.target]
            tail = out[max(0, i - 64):i + 1]
            seq = list(tail); worst = 0
            cnt = 0
            for c in out[t:t + 64]:
                if c.ws and c.kind != 'nop':
                    dist = 0; need = 0
                    for p in reversed(seq):
                        if p.ws == 0: continue
                        r = required(p, c)
                        if r > dist: need = max(need, r - dist)
                        dist += p.ws
                        if dist >= WIN: break
                    worst = max(worst, need)
                seq.append(c); cnt += c.ws
                if cnt >= WIN or c.op in ('s_branch', 's_endpgm'): break
            if worst:
                out[i:i] = nops(worst); changed = True
                break
    return [x.text for x in out]

class K:
    def __init__(self):
        self.lines = []
        self._lab = 0
    def __call__(self, text):
        for l in text.strip('\n').split('\n'):
            l = l.strip()
            if not l: continue
            if l.endswith(':') and ' ' not in l: self.lines.append(l)
            else: self.lines.append('    ' + l)
    def lab(self, base='L'):
        self._lab += 1
        return f'{base}_{self._lab}'
    def text(self):
        return '\n'.join(hazard_pass(self.lines)) + '\n'

def vr(a, n=1):
    return f'v{a}' if n == 1 else f'v[{a}:{a+n-1}]'
def sr(a, n=1):
    return f's{a}' if n == 1 else f's[{a}:{a+n-1}]'

def interleave(primary, fillers):
    out = []
    n = len(primary); m = len(fillers); k = 0
    for i, p in enumerate(primary):
        out.append(p)
        upto = (m * (i + 1) + n - 1) // n
        while k < upto:
            out.append(fillers[k]); k += 1
    out += fillers[k:]
    return out


import os
STAMPS = bool(int(os.environ.get('STAMPS', '0')))
ST0 = 80
def stamp(k, i, real=False):
    if not STAMPS: return
    k(f's_waitcnt lgkmcnt(0)')
    k(f'{"s_memrealtime" if real else "s_memtime"} s[{ST0+2*i}:{ST0+2*i+1}]')
    k(f's_waitcnt lgkmcnt(0)')
def stamp_flush(k, srd, s_wave, nwave, base, vt, n=8):
    if not STAMPS: return
    k(f's_mul_i32 s{ST0+18}, s2, {nwave}')
    k(f's_add_u32 s{ST0+18}, s{ST0+18}, s{s_wave}')
    k(f's_lshl_b32 s{ST0+18}, s{ST0+18}, 6')
    k(f's_add_u32 s{ST0+18}, s{ST0+18}, {base}')
    k(f'v_mov_b32 v{vt}, 0')
    for i in range(n):
        k(f'v_mov_b32 v{vt+1}, s{ST0+2*i}')
        k(f'buffer_store_dword v{vt+1}, v{vt}, s[{srd}:{srd+3}], s{ST0+18} offen offset:{4*i}')
        k('s_nop 1')
```

```python
import struct, math
MB = 1 << 20
WS_Q = 0
WS_KV = 2 * MB
WS_H = 6 * MB
WS_WD = 14 * MB
WS_WO = 16 * MB
WS_O = 17 * MB
WS_DUMMY = 19 * MB
WS_G = 20 * MB
WS_SIZE = 256 * MB
LOG2E = math.log2(math.e)
def flt(x):
    return '0x%08x' % struct.unpack('<I', struct.pack('<f', x))[0]
WS_ST = 32 * MB
WS_FL = 24 * MB
FL_A, FL_B, FL_C = WS_FL, WS_FL + 1024, WS_FL + 4096
FL_BYTES = 8192
```

```python
import sys, importlib
sys.path.insert(0, 'gen')
NAME = 'recurrent_scan__mha_block__glu_gated_glu__prompt'
HEAD = open(f'cdna_kernels/{NAME}.s.ref').read().split('; @launch')[0]

def kernel_block(label, body, vgpr, sgpr=102, accum=None):
    accum = accum or vgpr
    return f'''.text
.globl {label}
.p2align 8
.type {label},@function
{label}:
{body}
.section .rodata,"a"
.p2align 6
.amdhsa_kernel {label}
  .amdhsa_next_free_vgpr {vgpr}
  .amdhsa_next_free_sgpr {sgpr}
  .amdhsa_accum_offset {accum}
  .amdhsa_group_segment_fixed_size 0
  .amdhsa_kernarg_size 80
  .amdhsa_user_sgpr_count 2
  .amdhsa_user_sgpr_kernarg_segment_ptr 1
  .amdhsa_system_sgpr_workgroup_id_x 1
.end_amdhsa_kernel
'''

def build(kernels, out):
    s = HEAD
    for (label, text, grid, block, lds, vgpr) in kernels:
        s += f'; @launch kernel={label} grid=({grid},1,1) block=({block},1,1) lds={lds}\n'
    s += '.amdgcn_target "amdgcn-amd-amdhsa--gfx950"\n'
    for (label, text, grid, block, lds, vgpr) in kernels:
        s += kernel_block(label, text, vgpr)
    open(out, 'w').write(s)

if __name__ == '__main__':
    which = sys.argv[1] if len(sys.argv) > 1 else '123'
    out = sys.argv[2] if len(sys.argv) > 2 else f'cdna_kernels/{NAME}.s'
    ks = []
    if '1' in which:
        import k1
        ks.append(('k1_kernel', k1.gen_k1().text(), 256, 512, k1.K1_LDS, k1.K1_VGPR))
    if '2' in which:
        import k2
        ks.append(('k2_kernel', k2.gen_k2().text(), k2.K2_GRID, k2.K2_BLOCK, k2.K2_LDS, k2.K2_VGPR))
    if '3' in which:
        import k3
        ks.append(('k3_kernel', k3.gen_k3().text(), k3.K3_GRID, k3.K3_BLOCK, k3.K3_LDS, k3.K3_VGPR))
    build(ks, out)
```

```python
import re

TRANS = ('v_exp_f32','v_log_f32','v_rcp_f32','v_rsq_f32','v_sqrt_f32','v_sin_f32','v_cos_f32',
         'v_exp_f16','v_log_f16','v_rcp_f16','v_rsq_f16','v_sqrt_f16','v_rcp_iflag_f32')

def mfma_passes(op):
    if '32x32x16' in op or '32x32x8' in op: return 8
    if '16x16x32' in op or '16x16x16' in op: return 4
    if '4x4x4' in op: return 2
    raise ValueError(op)

_reg_re = re.compile(r'^(-|\|)?([vas])(\d+)\|?$')
_rng_re = re.compile(r'^(-|\|)?([vas])\[(\d+):(\d+)\]\|?$')

def regs_of(tok):
    tok = tok.strip()
    if tok.startswith('neg(') or tok.startswith('abs('):
        tok = tok[4:-1]
    m = _reg_re.match(tok)
    if m: return {(m.group(2), int(m.group(3)))}
    m = _rng_re.match(tok)
    if m: return {(m.group(2), i) for i in range(int(m.group(3)), int(m.group(4)) + 1)}
    if tok in ('vcc', 'vcc_lo', 'vcc_hi'): return {('vcc', 0)}
    if tok in ('exec', 'exec_lo', 'exec_hi'): return {('exec', 0)}
    if tok == 'm0': return {('m0', 0)}
    return set()

class Ins:
    __slots__ = ('text','op','ops','mods','kind','defs','uses','label','target','ws','A','B','C','D','passes',
                 'trans','dot','perm','dpp','rdl','seldst','lds','wide_store','sdata','cmaskuse')
    def __init__(self, text):
        self.text = text
        t = text.split(';')[0].strip()
        self.label = None; self.target = None; self.kind = 'other'
        self.defs = set(); self.uses = set(); self.ws = 1
        self.A = self.B = self.C = self.D = set(); self.passes = 0
        self.trans = self.dot = self.perm = self.dpp = self.rdl = self.seldst = self.lds = False
        self.wide_store = False; self.sdata = set(); self.op = ''; self.ops = []; self.mods = ''
        if not t or t.startswith('.'):
            self.kind = 'none'; self.ws = 0; return
        if t.endswith(':'):
            self.kind = 'label'; self.label = t[:-1]; self.ws = 0; return
        sp = t.split(None, 1)
        op = sp[0]; rest = sp[1] if len(sp) > 1 else ''
        parts = []; depth = 0; cur = ''
        for ch in rest:
            if ch == '[': depth += 1
            if ch == ']': depth -= 1
            if ch == ',' and depth == 0:
                parts.append(cur); cur = ''
            else: cur += ch
        if cur.strip(): parts.append(cur)
        mods = ''
        if parts:
            last = parts[-1].strip().split(None, 1)
            parts[-1] = last[0]
            if len(last) > 1: mods = last[1]
        parts = [p.strip() for p in parts]
        base = op
        for suf in ('_e32', '_e64', '_dpp', '_sdwa'):
            if base.endswith(suf): base = base[:-len(suf)]
        self.op = base; self.ops = parts; self.mods = mods
        R = [regs_of(p) for p in parts]
        allr = set().union(*R) if R else set()
        if base == 's_nop':
            self.kind = 'nop'; self.ws = int(parts[0], 0) + 1; return
        if base.startswith('v_mfma') or base.startswith('v_smfmac'):
            self.kind = 'mfma'; self.passes = mfma_passes(base)
            self.D, self.A, self.B, self.C = R[0], R[1], R[2], R[3]
            self.defs = set(R[0]); self.uses = R[1] | R[2] | R[3]; return
        if base.startswith('v_'):
            self.kind = 'valu'
            self.trans = base in TRANS
            self.dot = base.startswith('v_dot')
            self.perm = base.startswith('v_permlane')
            self.dpp = ('row_' in mods or 'quad_perm' in mods or 'wave_' in mods or op.endswith('_dpp'))
            self.rdl = base in ('v_readlane_b32', 'v_readfirstlane_b32', 'v_writelane_b32')
            self.seldst = op.endswith('_sdwa') or ('op_sel:' in mods and not base.startswith('v_pk') and not base.startswith('v_dot'))
            if base.startswith('v_cmpx'):
                self.defs = {('exec', 0)} | R[0]; self.uses = set().union(*R[1:])
            elif base.startswith('v_cmp'):
                self.defs = set(R[0]); self.uses = set().union(*R[1:])
            elif self.perm and 'swap' in base or base == 'v_swap_b32':
                self.defs = R[0] | R[1]; self.uses = R[0] | R[1]
            elif base in ('v_add_co_u32','v_sub_co_u32','v_subrev_co_u32','v_addc_co_u32','v_subb_co_u32','v_div_scale_f32','v_mad_u64_u32'):
                self.defs = R[0] | R[1]; self.uses = set().union(*R[2:])
            else:
                self.defs = set(R[0]); self.uses = set().union(*R[1:]) if len(R) > 1 else set()
                if base.startswith(('v_fmac', 'v_mac', 'v_dot2c', 'v_dot4c', 'v_writelane', 'v_pk_fmac')) or self.dpp or op.endswith('_sdwa'):
                    self.uses |= R[0]
            return
        if base.startswith(('buffer_', 'global_', 'flat_')):
            self.kind = 'vmem'
            self.lds = (' lds' in ' ' + mods) or 'load_lds' in base
            if 'load' in base and not self.lds:
                self.defs = set(R[0]); self.uses = set().union(*R[1:])
            else:
                self.uses = allr
                if self.lds: self.uses |= {('m0', 0)}
                if 'store' in base and ('x3' in base or 'x4' in base):
                    self.wide_store = True
                    self.sdata = R[0] if base.startswith('buffer_') else R[1]
                if 'atomic' in base and ('sc0' in mods or 'glc' in mods):
                    self.defs = set(R[0])
            return
        if base.startswith('ds_'):
            self.kind = 'ds'
            if base.startswith(('ds_read', 'ds_bpermute', 'ds_permute', 'ds_swizzle')) or '_rtn' in base:
                self.defs = set(R[0]); self.uses = set().union(*R[1:])
            else:
                self.uses = allr
            return
        if base.startswith('s_'):
            self.kind = 'salu'
            if base in ('s_branch',) or base.startswith('s_cbranch'):
                self.kind = 'branch'; self.target = parts[0]; return
            if base.startswith(('s_cmp', 's_bitcmp', 's_waitcnt', 's_barrier', 's_setprio', 's_endpgm', 's_sleep', 's_sethalt')):
                self.uses = allr; return
            if base.startswith(('s_load', 's_buffer_load', 's_memtime', 's_memrealtime')):
                self.kind = 'smem'
            self.defs = set(R[0]) if R else set(); self.uses = set().union(*R[1:]) if len(R) > 1 else set()
            if 'saveexec' in base: self.defs |= {('exec', 0)}
            return
        raise ValueError('unknown instruction: ' + text)

def _isv(s): return {r for r in s if r[0] in 'va' and r[0] != 'vcc'}
def _iss(s): return {r for r in s if r[0] in ('s', 'vcc')}

T_SAME = {2: 2, 4: 0, 8: 0}
T_OVL = {2: 4, 4: 6, 8: 10}
T_AB = {2: 5, 4: 8, 8: 12}
T_WAR = {2: 1, 4: 3, 8: 7}

def required(p, c):
    n = 0
    if p.kind == 'valu':
        vd = _isv(p.defs); sd = _iss(p.defs)
        if c.kind == 'mfma' and vd & c.uses: n = max(n, 3 if p.dot else 2)
        if c.kind == 'valu':
            if vd & c.uses:
                if p.trans and not c.trans: n = max(n, 1)
                if p.trans and c.trans: n = max(n, 1)
                if c.perm or c.dpp: n = max(n, 2)
                if c.rdl: n = max(n, 1)
                if p.seldst: n = max(n, 1)
                if p.dot and not (c.op == p.op and not (vd & set().union(*[regs_of(x) for x in c.ops[1:3]]))): n = max(n, 3)
            if p.seldst and vd & c.defs: n = max(n, 1)
            if p.dot and vd & c.defs and c.op != p.op: n = max(n, 3)
            if sd & c.uses:
                n = max(n, 4 if c.rdl else 2)
            if ('exec', 0) in p.defs:
                if c.dpp: n = max(n, 5)
                if c.rdl or c.perm: n = max(n, 4)
                if ('exec', 0) in c.uses: n = max(n, 2)
        if c.kind == 'mfma' and ('exec', 0) in p.defs: n = max(n, 4)
        if c.kind == 'vmem' and sd & c.uses: n = max(n, 5)
        if c.kind in ('salu', 'branch', 'smem') and sd & c.uses: n = max(n, 2)
        if c.kind == 'branch' and ('vcc', 0) in sd and 'vcc' in c.op: n = max(n, 5)
        if c.kind in ('vmem', 'ds') and p.trans and vd & c.uses: n = max(n, 1)
        if c.kind in ('vmem', 'ds') and p.dot and vd & c.uses: n = max(n, 3)
    if p.kind == 'mfma':
        D = p.D
        if c.kind == 'mfma':
            if D & c.C:
                if c.C == D and c.passes == p.passes: n = max(n, T_SAME[p.passes])
                else: n = max(n, T_OVL[p.passes])
            if D & (c.A | c.B): n = max(n, T_AB[p.passes])
            if D & c.D and not (D & c.C) and c.passes != p.passes: n = max(n, T_AB[p.passes])
        elif c.kind in ('valu', 'vmem', 'ds'):
            if D & (c.uses | c.defs): n = max(n, T_AB[p.passes])
        if c.kind == 'valu' and p.C & c.defs: n = max(n, T_WAR[p.passes])
        if c.kind in ('vmem', 'ds') and p.C & c.defs: n = max(n, T_WAR[p.passes])
    if p.kind == 'salu' and ('m0', 0) in p.defs:
        if (c.kind == 'vmem' and c.lds) or (c.kind == 'ds' and 'addtid' in c.op): n = max(n, 1)
    if p.kind == 'salu' and ('exec', 0) in p.defs:
        pass
    if p.kind == 'vmem' and p.wide_store and p.sdata & c.defs:
        n = max(n, 2 if c.kind in ('valu', 'mfma') else 1)
    return n

WIN = 24

def _need(prev, c):
    dist = 0; need = 0
    for p in reversed(prev):
        if p.ws == 0: continue
        r = required(p, c)
        if r > dist: need = max(need, r - dist)
        dist += p.ws
        if dist >= WIN: break
    return need

def nops(n):
    out = []
    while n > 0:
        k = min(n, 16); out.append(Ins(f'    s_nop {k-1}')); n -= k
    return out

def hazard_pass(lines):
    ins = [Ins(l) for l in lines]
    out = []
    for c in ins:
        if c.ws and c.kind != 'nop':
            n = _need(out[-64:], c)
            if n: out += nops(n)
        out.append(c)
    changed = True
    while changed:
        changed = False
        pos = {x.label: i for i, x in enumerate(out) if x.kind == 'label'}
        for i, b in enumerate(out):
            if b.kind != 'branch': continue
            t = pos[b.target]
            tail = out[max(0, i - 64):i + 1]
            seq = list(tail); worst = 0
            cnt = 0
            for c in out[t:t + 64]:
                if c.ws and c.kind != 'nop':
                    dist = 0; need = 0
                    for p in reversed(seq):
                        if p.ws == 0: continue
                        r = required(p, c)
                        if r > dist: need = max(need, r - dist)
                        dist += p.ws
                        if dist >= WIN: break
                    worst = max(worst, need)
                seq.append(c); cnt += c.ws
                if cnt >= WIN or c.op in ('s_branch', 's_endpgm'): break
            if worst:
                out[i:i] = nops(worst); changed = True
                break
    return [x.text for x in out]

class K:
    def __init__(self):
        self.lines = []
        self._lab = 0
    def __call__(self, text):
        for l in text.strip('\n').split('\n'):
            l = l.strip()
            if not l: continue
            if l.endswith(':') and ' ' not in l: self.lines.append(l)
            else: self.lines.append('    ' + l)
    def lab(self, base='L'):
        self._lab += 1
        return f'{base}_{self._lab}'
    def text(self):
        return '\n'.join(hazard_pass(self.lines)) + '\n'

def vr(a, n=1):
    return f'v{a}' if n == 1 else f'v[{a}:{a+n-1}]'
def sr(a, n=1):
    return f's{a}' if n == 1 else f's[{a}:{a+n-1}]'

def interleave(primary, fillers):
    out = []
    n = len(primary); m = len(fillers); k = 0
    for i, p in enumerate(primary):
        out.append(p)
        upto = (m * (i + 1) + n - 1) // n
        while k < upto:
            out.append(fillers[k]); k += 1
    out += fillers[k:]
    return out


import os
STAMPS = bool(int(os.environ.get('STAMPS', '0')))
ST0 = 80
def stamp(k, i, real=False):
    if not STAMPS: return
    k(f's_waitcnt lgkmcnt(0)')
    k(f'{"s_memrealtime" if real else "s_memtime"} s[{ST0+2*i}:{ST0+2*i+1}]')
    k(f's_waitcnt lgkmcnt(0)')
def stamp_flush(k, srd, s_wave, nwave, base, vt, n=8):
    if not STAMPS: return
    k(f's_mul_i32 s{ST0+18}, s2, {nwave}')
    k(f's_add_u32 s{ST0+18}, s{ST0+18}, s{s_wave}')
    k(f's_lshl_b32 s{ST0+18}, s{ST0+18}, 6')
    k(f's_add_u32 s{ST0+18}, s{ST0+18}, {base}')
    k(f'v_mov_b32 v{vt}, 0')
    for i in range(n):
        k(f'v_mov_b32 v{vt+1}, s{ST0+2*i}')
        k(f'buffer_store_dword v{vt+1}, v{vt}, s[{srd}:{srd+3}], s{ST0+18} offen offset:{4*i}')
        k('s_nop 1')

def rs(k, i, cyc=False):
    if not STAMPS: return
    k('s_waitcnt lgkmcnt(0)')
    k(f'{"s_memtime" if cyc else "s_memrealtime"} s[100:101]')
    k('s_waitcnt lgkmcnt(0)')
    k(f's_mov_b32 s{ST0+i}, s100')
def rs_init(k):
    if not STAMPS: return
    for i in range(16): k(f's_mov_b32 s{ST0+i}, 0')
def rs_flush(k, srd, s_wave, vt):
    if not STAMPS: return
    k('s_waitcnt vmcnt(0)')
    rs(k, 15)
    k(f's_lshl_b32 s100, s2, 3')
    k(f's_add_u32 s100, s100, s{s_wave}')
    k(f's_lshl_b32 s100, s100, 6')
    k(f's_add_u32 s100, s100, {32 << 20}')
    k(f'v_mov_b32 v{vt}, 0')
    for i in range(16):
        k(f'v_mov_b32 v{vt+1}, s{ST0+i}')
        k(f'buffer_store_dword v{vt+1}, v{vt}, s[{srd}:{srd+3}], s100 offen offset:{4*i}')
        k('s_nop 1')
```

```python
import os, re
from kasm import *
from layout import *
import k1

CNT = k1.K1_LDS
F_LDS = CNT + 64
CMB = 0
RS_ = 272
PART = 49152
SPIN = 200000

S_WS = k1.S_WS
S_KV, S_KH, S_XS, S_OUT, S_DBG = 24, 28, 32, 36, 44
S_W = k1.S_W
S_HEAD, S_QB, S_X8, S_I = 51, 52, 53, 54
S_K, S_V, S_CNT = 55, 56, 57
S_HI = k1.S_HI
S_O, S_FC = 60, 61
S_T = 62
V_L, V_OFF = 1, 2
Q = 16
O = 48
S = [112, 128]
P = 144
KV = [152, 168, 184, 200]
T = 216

def mf(d, a, b, c):
    cc = f'v[{c}:{c+15}]' if c is not None else '0'
    return f'v_mfma_f32_32x32x16_bf16 v[{d}:{d+15}], v[{a}:{a+3}], v[{b}:{b+3}], {cc}'
def ld(dst, srd, so, off):
    return f'buffer_load_dwordx4 v[{dst}:{dst+3}], v{V_OFF}, s[{srd}:{srd+3}], s{so} offen offset:{off}'

def soft_arrive(k, idx, va, vb):
    k(f'''
    v_mov_b32 v{va}, {CNT + 4*idx}
    v_mov_b32 v{vb}, 1
    s_waitcnt lgkmcnt(0)
    s_mov_b64 exec, 1
    ds_add_u32 v{va}, v{vb}
    s_mov_b64 exec, -1
    ''')
def soft_wait(k, idx, va, vb, n=4):
    l = k.lab('fz_sw')
    k(f'''
    v_mov_b32 v{va}, {CNT + 4*idx}
    s_mov_b32 s{S_T+16}, 0
{l}:
    ds_read_b32 v{vb}, v{va}
    s_add_u32 s{S_T+16}, s{S_T+16}, 1
    s_waitcnt lgkmcnt(0)
    v_readfirstlane_b32 s{S_T+17}, v{vb}
    s_cmp_ge_u32 s{S_T+17}, {n}
    s_cbranch_scc1 {l}_ok
    s_cmp_ge_u32 s{S_T+16}, {SPIN*8}
    s_cbranch_scc1 {l}_ok
    s_sleep 1
    s_branch {l}
{l}_ok:
    ''')
def poll(k, srd, voff, so, vt, n):
    l = k.lab('fz_pl')
    k(f'''
    s_mov_b32 s{S_T+16}, 0
{l}:
    buffer_load_dword{'x4' if n == 4 else ''} {vr(vt, n)}, v{voff}, s[{srd}:{srd+3}], {so} offen sc1
    s_add_u32 s{S_T+16}, s{S_T+16}, 1
    s_waitcnt vmcnt(0)
    ''')
    if n == 4:
        k(f'''
        v_and_b32 v{vt}, v{vt}, v{vt+1}
        v_and_b32 v{vt+2}, v{vt+2}, v{vt+3}
        v_and_b32 v{vt}, v{vt}, v{vt+2}
        ''')
    k(f'''
    v_cmp_ne_u32 vcc, 1, v{vt}
    s_cmp_ge_u32 s{S_T+16}, {SPIN}
    s_cbranch_scc1 {l}_ok
    s_cbranch_vccz {l}_ok
    s_sleep 2
    s_branch {l}
{l}_ok:
    ''')

def attn_tile(k, kb, qt):
    t = kb * 4 + qt
    s = S[t & 1]; sn = S[(t + 1) & 1]
    pk_, pq = (kb, qt - 1) if qt > 0 else ((kb - 1) & 3, 3)
    nk, nq = (kb, qt + 1) if qt < 3 else ((kb + 1) & 3, 0)
    e = lambda i: f'v_exp_f32 v{s+i}, v{s+i}'
    c = lambda j: f'v_cvt_pk_bf16_f32 v{P+j}, v{s+2*j}, v{s+2*j+1}'
    c7p = f'v_cvt_pk_bf16_f32 v{P+7}, v{sn+14}, v{sn+15}'
    pv1p = mf(O + 16 * pq, KV[pk_] + 12, P + 4, O + 16 * pq)
    qk0 = mf(sn, KV[nk] + 0, Q + 8 * nq, None)
    qk1 = mf(sn, KV[nk] + 4, Q + 8 * nq + 4, sn)
    pv0 = mf(O + 16 * qt, KV[kb] + 8, P, O + 16 * qt)
    x1 = []; x2 = []; w_qk = []; w_pv = []
    if qt == 1:
        b = KV[(kb - 1) & 3]
        x1 = [ld(b + 8, S_KV, S_V, 2048)]; x2 = [ld(b + 12, S_KV, S_V, 3072), f's_add_u32 s{S_V}, s{S_V}, 4096']
    if qt == 3:
        b = KV[kb]
        w_qk = ['s_waitcnt vmcnt(10)']
        x1 = [ld(b + 0, S_KV, S_K, 0)]; x2 = [ld(b + 4, S_KV, S_K, 1024), f's_add_u32 s{S_K}, s{S_K}, 4096']
    if qt == 0:
        w_pv = ['s_waitcnt vmcnt(10)']
    seq = [e(0), c7p, e(1), e(2), pv1p, c(0), e(3), e(4), c(1), e(5)] + w_qk + [qk0, e(6), c(2), e(7)] + x1 + [e(8), c(3), e(9),
           qk1, e(10), c(4), e(11)] + x2[:1] + [e(12), c(5), e(13)] + w_pv + [pv0, e(14)] + x2[1:] + [c(6), e(15)]
    for x in seq: k(x)

def gen_attn(k):
    k('fz_attn:')
    if os.environ.get('PRIO'): k('s_setprio 3')
    k(f's_mov_b32 s{S_K}, 0')
    k(ld(KV[0], S_KV, S_K, 0)); k(ld(KV[0] + 4, S_KV, S_K, 1024))
    for i in range(4):
        k(ld(Q + 8 * i, S_WS, S_T + 4 + i, 0)); k(ld(Q + 8 * i + 4, S_WS, S_T + 4 + i, 1024))
    k(ld(KV[0] + 8, S_KV, S_K, 2048)); k(ld(KV[0] + 12, S_KV, S_K, 3072))
    for b in (1, 2, 3):
        k(f's_add_u32 s{S_K}, s{S_K}, 4096')
        k(ld(KV[b], S_KV, S_K, 0)); k(ld(KV[b] + 4, S_KV, S_K, 1024))
        if b < 3:
            k(ld(KV[b] + 8, S_KV, S_K, 2048)); k(ld(KV[b] + 12, S_KV, S_K, 3072))
    k(f'''
    s_mov_b32 s{S_V}, s{S_K}
    s_add_u32 s{S_K}, s{S_K}, 4096
    s_mov_b32 s{S_CNT}, 4
    s_waitcnt vmcnt(18)
    ''')
    rs(k, 6)
    k(mf(S[0], KV[0], Q, None)); k(mf(S[0], KV[0] + 4, Q + 4, S[0]))
    k('s_waitcnt vmcnt(12)')
    k('fz_aloop:')
    for kb in range(4):
        for qt in range(4):
            attn_tile(k, kb, qt)
    k(f'''
    s_sub_u32 s{S_CNT}, s{S_CNT}, 1
    s_cmp_lg_u32 s{S_CNT}, 0
    s_cbranch_scc1 fz_aloop
    v_cvt_pk_bf16_f32 v{P+7}, v{S[1]+14}, v{S[1]+15}
    ''')
    k(mf(O + 48, KV[3] + 12, P + 4, O + 48))
    rs(k, 7)
    for i in (1, 2, 3):
        k(f'''
        s_add_u32 s{S_T}, s{S_W}, {i}
        s_and_b32 s{S_T}, s{S_T}, 3
        s_mul_i32 s{S_T}, s{S_T}, {3*4096}
        s_add_u32 s{S_T}, s{S_T}, {CMB + (i-1)*4096}
        v_add_u32 v{T+i}, s{S_T}, v{V_OFF}
        ''')
        for q in range(4):
            k(f'ds_write_b128 v{T+i}, v[{O+16*i+4*q}:{O+16*i+4*q+3}] offset:{q*1024}')
    k(f'''
    s_mul_i32 s{S_T}, s{S_W}, {3*4096}
    s_add_u32 s{S_T}, s{S_T}, {CMB}
    v_add_u32 v{T}, s{S_T}, v{V_OFF}
    ''')
    soft_arrive(k, 0, T + 4, T + 5)
    soft_wait(k, 0, T + 4, T + 5)
    rs(k, 8)
    for j in range(12):
        k(f'ds_read_b128 v[{O+16+4*j}:{O+19+4*j}], v{T} offset:{j*1024}')
    for s_ in range(3):
        for q in range(4):
            k(f's_waitcnt lgkmcnt({11 - (4*s_+q)})')
            for r in range(4):
                k(f'v_add_f32 v{O+4*q+r}, v{O+4*q+r}, v{O+16+16*s_+4*q+r}')
    k(f'''
    v_mov_b32 v{T}, v{O+12}
    v_mov_b32 v{T+1}, v{O+12}
    v_permlane32_swap_b32 v{T}, v{T+1}
    v_mul_f32 v{T+2}, 0, v{O}
    ''')
    for r in range(1, 16):
        k(f'v_fmac_f32 v{T+2}, 0, v{O+r}')
    k(f'''
    v_add_f32 v{T+2}, v{T+2}, v{T+1}
    v_cmp_nle_f32 vcc, {flt(2.0**-60)}, v{T+2}
    v_mov_b32 v{T+3}, {flt(2.0**60)}
    v_cmp_nge_f32 s[{S_T}:{S_T+1}], v{T+3}, v{T+2}
    s_or_b64 vcc, vcc, s[{S_T}:{S_T+1}]
    s_cbranch_vccnz fz_slow
fz_norm:
    v_rcp_f32 v{T+1}, v{T+1}
    ''')
    for r in range(16):
        k(f'v_mul_f32 v{O+r}, v{O+r}, v{T+1}')
    for j in range(8):
        k(f'v_cvt_pk_bf16_f32 v{P+j}, v{O+2*j}, v{O+2*j+1}')
    k(f'''
    v_cndmask_b32 v{P+6}, v{P+6}, 0, s[{S_HI}:{S_HI+1}]
    v_cndmask_b32 v{P+7}, v{P+7}, 0, s[{S_HI}:{S_HI+1}]
    buffer_store_dwordx4 v[{P}:{P+3}], v{V_OFF}, s[{S_WS}:{S_WS+3}], s{S_O} offen sc1
    buffer_store_dwordx4 v[{P+4}:{P+7}], v{V_OFF}, s[{S_WS}:{S_WS+3}], s{S_O} offen offset:1024 sc1
    v_mov_b32 v{T}, 0
    v_mov_b32 v{T+1}, 1
    s_waitcnt vmcnt(0)
    s_mov_b64 exec, 1
    buffer_store_dword v{T+1}, v{T}, s[{S_WS}:{S_WS+3}], s{S_FC} offen sc1
    s_mov_b64 exec, -1
    ''')
    rs(k, 9)
    rs_flush(k, S_WS, S_W, 4)
    k('s_endpgm')
    s = S[0]; b = KV[0]; M = T + 4
    k(f'''
fz_slow:
    v_mov_b32 v{M}, 0xff800000
    s_mov_b32 s{S_K}, 0
fz_slow1:
    ''')
    k(ld(b, S_KH, S_K, 0)); k(ld(b + 4, S_KH, S_K, 1024))
    k('s_waitcnt vmcnt(0)')
    k(mf(s, b, Q, None)); k(mf(s, b + 4, Q + 4, s))
    for j in range(8):
        k(f'v_max3_f32 v{M}, v{M}, v{s+2*j}, v{s+2*j+1}')
    k(f'''
    s_add_u32 s{S_K}, s{S_K}, 4096
    s_cmp_lt_u32 s{S_K}, {64*4096}
    s_cbranch_scc1 fz_slow1
    v_mov_b32 v{M+1}, v{M}
    v_permlane32_swap_b32 v{M}, v{M+1}
    v_max_f32 v{M}, v{M}, v{M+1}
    s_mov_b32 s{S_K}, 0
    ''')
    for r in range(16): k(f'v_mov_b32 v{O+r}, 0')
    k('fz_slow2:')
    for i in range(4): k(ld(b + 4 * i, S_KH, S_K, 1024 * i))
    k('s_waitcnt vmcnt(0)')
    k(mf(s, b, Q, None)); k(mf(s, b + 4, Q + 4, s))
    for r in range(16): k(f'v_sub_f32 v{s+r}, v{s+r}, v{M}')
    for r in range(16): k(f'v_exp_f32 v{s+r}, v{s+r}')
    for j in range(8): k(f'v_cvt_pk_bf16_f32 v{P+j}, v{s+2*j}, v{s+2*j+1}')
    k(mf(O, b + 8, P, O)); k(mf(O, b + 12, P + 4, O))
    k(f'''
    s_add_u32 s{S_K}, s{S_K}, 4096
    s_cmp_lt_u32 s{S_K}, {64*4096}
    s_cbranch_scc1 fz_slow2
    v_mov_b32 v{T}, v{O+12}
    v_mov_b32 v{T+1}, v{O+12}
    v_permlane32_swap_b32 v{T}, v{T+1}
    s_branch fz_norm
    ''')

ACC = 16
GB = 80
GD = int(os.environ.get('K2GD', '6'))
GREG = 208
def gen_gemm(k):
    SH0, SH1, SW0, SW1 = S_T + 6, S_T + 7, S_T + 8, S_T + 9
    KQ, TP, NP = S_T + 10, S_T + 11, S_T + 12
    k(f'''
fz_gemm:
    s_cmp_lt_u32 s{S_I}, 28
    s_cbranch_scc0 fz_end
    ''')
    def loads(sl):
        b = GB + 16 * (sl % GD)
        out = [ld(b + 4 * i, S_WS, so, (sl & 3) * 1024) for i, so in enumerate((SW0, SH0, SH1, SW1))]
        if sl & 3 == 3:
            out += [f's_add_u32 s{so}, s{so}, 4096' for so in (SW0, SH0, SH1, SW1)]
        return out
    for sl in range(GD):
        for x in loads(sl): k(x)
    rs(k, 6)
    for sl in range(28):
        b = GB + 16 * (sl % GD)
        later = min(GD - 1, 27 - sl)
        w0, h0, h1, w1 = b, b + 4, b + 8, b + 12
        c = lambda i: (ACC + 16 * i) if sl else None
        k(f's_waitcnt vmcnt({4*later + 2})')
        k(mf(ACC + 0, w0, h0, c(0)))
        k(f's_waitcnt vmcnt({4*later + 1})')
        k(mf(ACC + 16, w0, h1, c(1)))
        k(f's_waitcnt vmcnt({4*later})')
        k(mf(ACC + 32, w1, h0, c(2)))
        k(mf(ACC + 48, w1, h1, c(3)))
        if sl + GD < 28:
            for x in loads(sl + GD): k(x)
    rs(k, 7)
    def write_part():
        for i in range(4):
            nt, tt = i >> 1, i & 1
            for q in range(4):
                k(f'ds_write_b128 v3, v[{ACC+16*i+4*q}:{ACC+16*i+4*q+3}] offset:{tt*32*RS_ + nt*128 + q*32}')
    def read_part():
        for p in range(4):
            for w in range(4):
                k(f'ds_read_b128 v[{16+16*p+4*w}:{16+16*p+4*w+3}], v7 offset:{w*64*RS_ + p*16*RS_}')
    def sum_part(p):
        a = 16 + 16 * p
        k(f's_waitcnt lgkmcnt({12 - 4*p})')
        for r in range(4):
            k(f'v_add_f32 v{a+r}, v{a+r}, v{a+4+r}')
            k(f'v_add_f32 v{a+8+r}, v{a+8+r}, v{a+12+r}')
        for r in range(4):
            k(f'v_add_f32 v{a+r}, v{a+r}, v{a+8+r}')
        return a
    k(f'''
    v_and_b32 v3, 31, v{V_L}
    v_lshrrev_b32 v4, 5, v{V_L}
    v_mul_u32_u24 v3, {RS_}, v3
    v_lshl_add_u32 v3, v4, 4, v3
    s_mul_i32 s{S_T+3}, s{KQ}, {64*RS_}
    s_add_u32 s{S_T+3}, s{S_T+3}, {PART}
    v_add_u32 v3, s{S_T+3}, v3
    ''')
    write_part()
    k(f'''
    v_subrev_u32 v5, 256, v0
    v_lshrrev_b32 v6, 4, v5
    v_and_b32 v5, 15, v5
    v_mul_u32_u24 v7, {RS_}, v6
    v_lshl_add_u32 v7, v5, 4, v7
    v_add_u32 v7, {PART}, v7
    v_mul_u32_u24 v9, {448*2}, v6
    v_lshl_add_u32 v9, v5, 3, v9
    s_lshl_b32 s{S_T+3}, s{KQ}, 13
    s_lshl_b32 s{SH0}, s{TP}, 16
    s_add_u32 s{SH0}, s{SH0}, s{S_T+3}
    s_add_u32 s{SH0}, s{SH0}, {WS_O}
    s_add_u32 s{SH1}, s{SH0}, 32768
    s_lshl_b32 s{SW0}, s{NP}, 16
    s_add_u32 s{SW0}, s{SW0}, s{S_T+3}
    s_add_u32 s{SW0}, s{SW0}, {WS_WO}
    s_add_u32 s{SW1}, s{SW0}, 32768
    s_mul_i32 s{S_T+4}, s{TP}, {64*448*2}
    s_lshl_b32 s{S_T+5}, s{NP}, 7
    s_add_u32 s{S_T+4}, s{S_T+4}, s{S_T+5}
    ''')
    B = 80
    for sl in range(8):
        b = B + 16 * sl
        k(ld(b, S_WS, SW0, (sl & 3) * 1024)); k(ld(b + 12, S_WS, SW1, (sl & 3) * 1024))
        if sl == 3:
            for so in (SW0, SW1): k(f's_add_u32 s{so}, s{so}, 4096')
    for p in range(4):
        k(f'''
        s_add_u32 s{S_T+p if p else S_T+13}, s{S_T+4}, {p*16*448*2}
        buffer_load_dwordx2 v[{GREG+16+2*p}:{GREG+17+2*p}], v9, s[{S_XS}:{S_XS+3}], s{S_T+p if p else S_T+13} offen
        ''')
    soft_arrive(k, 1, 10, 11)
    soft_wait(k, 1, 10, 11)
    rs(k, 8)
    read_part()
    for p in range(4):
        a = sum_part(p); g = GREG + 4 * p
        for r in range(4):
            k(f'v_mul_f32 v{a+4+r}, {flt(-LOG2E)}, v{a+r}')
        for r in range(4):
            k(f'v_exp_f32 v{a+4+r}, v{a+4+r}')
        for r in range(4):
            k(f'v_add_f32 v{a+4+r}, 1.0, v{a+4+r}')
        for r in range(4):
            k(f'v_rcp_f32 v{a+4+r}, v{a+4+r}')
        for r in range(4):
            k(f'v_mul_f32 v{g+r}, v{a+r}, v{a+4+r}')
    soft_arrive(k, 2, 10, 11)
    rs(k, 9)
    k(f'''
    v_and_b32 v12, 31, v{V_L}
    v_lshlrev_b32 v12, 2, v12
    s_lshl_b32 s{S_T+5}, s{TP}, 7
    s_add_u32 s{S_T+5}, s{S_T+5}, {FL_C}
    ''')
    poll(k, S_WS, 12, f's{S_T+5}', 13, 1)
    rs(k, 10)
    for sl in range(8):
        b = B + 16 * sl
        k(ld(b + 4, S_WS, SH0, (sl & 3) * 1024)); k(ld(b + 8, S_WS, SH1, (sl & 3) * 1024))
        if sl == 3:
            for so in (SH0, SH1): k(f's_add_u32 s{so}, s{so}, 4096')
    soft_wait(k, 2, 10, 11)
    for sl in range(8):
        b = B + 16 * sl
        later = 2 * (7 - sl)
        w0, h0, h1, w1 = b, b + 4, b + 8, b + 12
        c = lambda i: (ACC + 16 * i) if sl else None
        k(f's_waitcnt vmcnt({later + 1})')
        k(mf(ACC + 0, w0, h0, c(0)))
        k(mf(ACC + 32, w1, h0, c(2)))
        k(f's_waitcnt vmcnt({later})')
        k(mf(ACC + 16, w0, h1, c(1)))
        k(mf(ACC + 48, w1, h1, c(3)))
    rs(k, 11)
    write_part()
    soft_arrive(k, 3, 10, 11)
    soft_wait(k, 3, 10, 11)
    rs(k, 12)
    read_part()
    for p in range(4):
        a = sum_part(p); g = GREG + 4 * p; x = GREG + 16 + 2 * p
        k(f'''
        v_lshlrev_b32 v{a+4}, 16, v{x}
        v_and_b32 v{a+5}, 0xffff0000, v{x}
        v_lshlrev_b32 v{a+6}, 16, v{x+1}
        v_and_b32 v{a+7}, 0xffff0000, v{x+1}
        ''')
        for r in range(4):
            k(f'v_fmac_f32 v{a+4+r}, v{a+r}, v{g+r}')
        k(f'''
        v_cvt_pk_bf16_f32 v{a+8}, v{a+4}, v{a+5}
        v_cvt_pk_bf16_f32 v{a+9}, v{a+6}, v{a+7}
        buffer_store_dwordx2 v[{a+8}:{a+9}], v9, s[{S_OUT}:{S_OUT+3}], s{S_T+p if p else S_T+13} offen
        ''')
    rs(k, 13)
    rs_flush(k, S_WS, S_W, 4)
    k('s_endpgm')

def gen_p3(k):
    SH0, SH1, SW0, SW1 = S_T + 6, S_T + 7, S_T + 8, S_T + 9
    KQ, TP, NP = S_T + 10, S_T + 11, S_T + 12
    k(f'''
fz_p3:
    s_lshl_b32 s{S_T+14}, s{k1.S_J}, 4
    s_add_u32 s{S_T+14}, s{S_T+14}, s{k1.S_RB}
    s_lshl_b32 s{S_T+14}, s{S_T+14}, 2
    s_add_u32 s{S_T+14}, s{S_T+14}, {FL_A}
    s_mov_b32 s{S_DBG}, s20
    s_mov_b32 s{S_DBG+1}, s21
    s_mov_b32 s{S_DBG+2}, 256
    s_mov_b32 s{S_DBG+3}, 0x20000
    s_mov_b32 s{S_XS}, s4
    s_mov_b32 s{S_XS+1}, s5
    s_mov_b32 s{S_XS+2}, {2048*448*2}
    s_mov_b32 s{S_XS+3}, 0x20000
    s_mov_b32 s{S_OUT}, s18
    s_mov_b32 s{S_OUT+1}, s19
    s_mov_b32 s{S_OUT+2}, {2048*448*2}
    s_mov_b32 s{S_OUT+3}, 0x20000
    s_and_b32 s{S_X8}, s2, 7
    s_lshr_b32 s{S_I}, s2, 3
    v_lshlrev_b32 v{V_OFF}, 4, v{V_L}
    v_mov_b32 v3, 0
    s_cmp_ge_u32 s{S_W}, 4
    s_cbranch_scc1 fz_p3g
    s_lshl_b32 s{S_HEAD}, s{S_X8}, 1
    s_lshr_b32 s{S_T}, s{S_I}, 4
    s_add_u32 s{S_HEAD}, s{S_HEAD}, s{S_T}
    s_and_b32 s{S_QB}, s{S_I}, 15
    s_lshl_b32 s{S_T}, s{S_HEAD}, 18
    s_add_u32 s{S_T}, s{S_T}, {WS_KV}
    s_lshl_b32 s{S_T+1}, s{S_W}, 16
    s_add_u32 s{S_T+1}, s{S_T+1}, s{S_T}
    s_lshl_b32 s{S_T+2}, s{S_HEAD}, 6
    s_lshl_b32 s{S_T+3}, s{S_QB}, 2
    s_add_u32 s{S_T+2}, s{S_T+2}, s{S_T+3}
    s_add_u32 s{S_KV}, s22, s{S_T+1}
    s_addc_u32 s{S_KV+1}, s23, 0
    s_mov_b32 s{S_KV+2}, 65536
    s_mov_b32 s{S_KV+3}, 0x20000
    s_add_u32 s{S_KH}, s22, s{S_T}
    s_addc_u32 s{S_KH+1}, s23, 0
    s_mov_b32 s{S_KH+2}, {256*1024}
    s_mov_b32 s{S_KH+3}, 0x20000
    ''')
    for i in range(4):
        k(f'''
        s_add_u32 s{S_T+4+i}, s{S_W}, {i}
        s_and_b32 s{S_T+4+i}, s{S_T+4+i}, 3
        s_add_u32 s{S_T+4+i}, s{S_T+4+i}, s{S_T+2}
        s_lshl_b32 s{S_T+4+i}, s{S_T+4+i}, 11
        ''')
    k(f'''
    s_lshl_b32 s{S_O}, s{S_QB}, 2
    s_add_u32 s{S_O}, s{S_O}, s{S_W}
    s_lshl_b32 s{S_O}, s{S_O}, 4
    s_add_u32 s{S_O}, s{S_O}, s{S_HEAD}
    s_lshl_b32 s{S_FC}, s{S_O}, 2
    s_add_u32 s{S_FC}, s{S_FC}, {FL_C}
    s_lshl_b32 s{S_O}, s{S_O}, 11
    s_add_u32 s{S_O}, s{S_O}, {WS_O}
    ''')
    for r in range(O, O + 64): k(f'v_mov_b32 v{r}, 0')
    for r in list(range(P + 4, P + 8)) + list(range(KV[3] + 12, KV[3] + 16)) + [S[1] + 14, S[1] + 15]:
        k(f'v_mov_b32 v{r}, 0')
    k(f'''
    s_branch fz_p3s
fz_p3g:
    s_sub_u32 s{KQ}, s{S_W}, 4
    s_mul_i32 s{TP}, s{S_I}, 37
    s_lshr_b32 s{TP}, s{TP}, 8
    s_mul_i32 s{NP}, s{TP}, 7
    s_sub_u32 s{NP}, s{S_I}, s{NP}
    s_lshl_b32 s{S_T+3}, s{S_X8}, 2
    s_add_u32 s{TP}, s{TP}, s{S_T+3}
    s_mul_i32 s{S_T+3}, s{KQ}, {28*1024}
    s_mul_i32 s{SH0}, s{TP}, {2*112*1024}
    s_add_u32 s{SH0}, s{SH0}, s{S_T+3}
    s_add_u32 s{SH0}, s{SH0}, {WS_H}
    s_add_u32 s{SH1}, s{SH0}, {112*1024}
    s_mul_i32 s{SW0}, s{NP}, {2*112*1024}
    s_add_u32 s{SW0}, s{SW0}, s{S_T+3}
    s_add_u32 s{SW0}, s{SW0}, {WS_WD}
    s_add_u32 s{SW1}, s{SW0}, {112*1024}
fz_p3s:
    s_cmp_lg_u32 s{S_W}, 0
    s_cbranch_scc1 fz_p3b
    ''')
    poll(k, S_DBG, 3, '0', 4, 1)
    k(f'''
fz_p3b:
    s_waitcnt vmcnt(0)
    ''')
    rs(k, 4)
    k(f'''
    s_barrier
    s_cmp_lg_u32 s{S_W}, 0
    s_cbranch_scc1 fz_p3c
    v_mov_b32 v4, 1
    s_mov_b64 exec, 1
    buffer_store_dword v4, v3, s[{S_WS}:{S_WS+3}], s{S_T+14} offen sc1
    s_mov_b64 exec, -1
    s_mov_b32 s{S_T+15}, {FL_A}
    ''')
    poll(k, S_WS, V_OFF, f's{S_T+15}', 4, 4)
    k(f'''
fz_p3c:
    s_barrier
    ''')
    rs(k, 5)
    k(f'''
    s_cmp_ge_u32 s{S_W}, 4
    s_cbranch_scc1 fz_gemm
    ''')
    gen_attn(k)
    gen_gemm(k)

def gen_fz():
    k1.stamp = lambda *a, **kw: None
    k1.stamp_flush = lambda *a, **kw: None
    m = {'bar0': 1, 'loop': 2, 'epi': 3}
    k1.st = lambda k, name: rs(k, m[name]) if name in m else None
    k1.STAMPS = False
    k = k1.gen_k1()
    L = k.lines
    out = []
    w7 = False
    for i, l in enumerate(L):
        if 'buffer_store_dwordx4' in l: l = l + ' sc1'
        if l.strip() == 's_endpgm' and L[i-1].strip() != 'k1_end:': l = '    s_branch fz_p3'
        out.append(l)
    k.lines = out
    idx = next(i for i, l in enumerate(k.lines) if 's_cbranch_scc1 k1_w1' in l) - 1
    pre = K()
    rs_init(pre); rs(pre, 0)
    pre(f'''
    v_mov_b32 v4, 0
    v_mov_b32 v5, 0
    v_mov_b32 v6, 0
    v_mov_b32 v7, 0
    v_mov_b32 v8, {CNT}
    ds_write_b128 v8, v[4:7]
    s_lshl_b32 s{k1.S_T}, s2, 3
    s_add_u32 s{k1.S_T}, s{k1.S_T}, s{S_W}
    s_cmp_lg_u32 s{k1.S_T}, 7
    s_cbranch_scc1 fz_noclr
    v_lshlrev_b32 v8, 4, v{V_L}
    s_mov_b32 s{k1.S_T}, {WS_FL}
    s_mov_b32 s{k1.S_T+1}, {WS_FL + 4096}
    ''')
    for h in range(2):
        for i in range(4):
            pre(f'buffer_store_dwordx4 v[4:7], v8, s[{S_WS}:{S_WS+3}], s{k1.S_T+h} offen offset:{1024*i} sc1')
    pre('fz_noclr:')
    k.lines[idx:idx] = pre.lines
    i7 = next(i for i, l in enumerate(k.lines) if l == 'k1_w7:')
    ib = next(i for i in range(i7, len(k.lines)) if k.lines[i].strip() == 's_barrier')
    pub = K()
    pub(f'''
    s_cmp_lg_u32 s2, 0
    s_cbranch_scc1 fz_nopub
    s_mov_b32 s{k1.S_SJ}, s20
    s_mov_b32 s{k1.S_SJ+1}, s21
    s_mov_b32 s{k1.S_SJ+2}, 256
    s_mov_b32 s{k1.S_SJ+3}, 0x20000
    v_mov_b32 v4, 0
    v_mov_b32 v5, 1
    s_mov_b64 exec, 1
    buffer_store_dword v5, v4, s[{k1.S_SJ}:{k1.S_SJ+3}], 0 offen sc1
    s_mov_b64 exec, -1
fz_nopub:
    ''')
    k.lines[ib:ib] = pub.lines
    ie = next(i for i, l in enumerate(k.lines) if l == 'k1_end:')
    tail = k.lines[ie:]
    k.lines = k.lines[:ie]
    gen_p3(k)
    k('fz_end:')
    k.lines += tail
    return k

if __name__ == '__main__':
    import sys, build
    out = sys.argv[1] if len(sys.argv) > 1 else f'cdna_kernels/{build.NAME}.s'
    build.build([('fz_kernel', gen_fz().text(), 256, 512, F_LDS, 256)], out)
```
